```python
import torch

def _softmax(x, axis=-1):
    return torch.softmax(x, dim=axis)
def _gelu(x):
    return torch.nn.functional.gelu(x, approximate="tanh")
def _silu(x):
    return torch.nn.functional.silu(x)
def _sigmoid(x):
    return torch.sigmoid(x)
def _layernorm(x, axis=-1, eps=1e-5):
    m = x.mean(dim=axis, keepdim=True)
    v = x.var(dim=axis, keepdim=True, unbiased=False)
    return (x - m) / torch.sqrt(v + eps)
def _scatter_add(tgt, idx, src, axis=0):
    return tgt.clone().index_add_(axis, idx, src)
def _segment_sum(src, seg, n):
    out = torch.zeros((n,) + src.shape[1:], dtype=src.dtype)
    return out.index_add_(0, seg, src)
def _pad(x, pw):
    flat = tuple(v for pair in reversed(pw) for v in pair)
    return torch.nn.functional.pad(x, flat)

kernel_name = 'recurrent_scan__spectral_fnet__mixer_s_mlp__prompt'

def setup_inputs():

    _w = (lambda a: (lambda t: t.to(torch.bfloat16) if t.is_floating_point() else t)(torch.as_tensor(a)))
    def _A_setup():
        B, S, D = 1, 2048, 512
        ns = torch.arange(S)[:, None] * torch.arange(S)[None, :]
        nd = torch.arange(D)[:, None] * torch.arange(D)[None, :]
        Ws_re = torch.cos(-2.0 * torch.pi * ns / S).to(float)
        Ws_im = torch.sin(-2.0 * torch.pi * ns / S).to(float)
        Wd_re = torch.cos(-2.0 * torch.pi * nd / D).to(float)
        Wd_im = torch.sin(-2.0 * torch.pi * nd / D).to(float)
        return {
            "x": _w((lambda *s: torch.randn(*s, dtype=torch.bfloat16) * 0.05)(B, S, D)),
            "dft_seq_re": _w(Ws_re),
            "dft_seq_im": _w(Ws_im),
            "dft_hid_re": _w(Wd_re),
            "dft_hid_im": _w(Wd_im),
        }
    _A_in = _A_setup()

    def _B_setup():
        B, S, D, F = 1, 2048, 512, 1792
        return {
            "x":  _w((lambda *s: torch.randn(*s, dtype=torch.bfloat16) * 0.05)(B, S, D)),
            "w1": _w((lambda *s: torch.randn(*s, dtype=torch.bfloat16) * 3.2)(D, D) * (D ** -0.5)),
            "w2": _w((lambda *s: torch.randn(*s, dtype=torch.bfloat16) * 3.2)(D, D) * (D ** -0.5)),
            "w3": _w((lambda *s: torch.randn(*s, dtype=torch.bfloat16) * 3.2)(D, F) * (D ** -0.5)),
            "w4": _w((lambda *s: torch.randn(*s, dtype=torch.bfloat16) * 1.6)(F, D) * (F ** -0.5)),
        }
    _B_in = _B_setup()

    return {
        "A_x": _A_in["x"],
        "A_dft_seq_re": _A_in["dft_seq_re"],
        "A_dft_seq_im": _A_in["dft_seq_im"],
        "A_dft_hid_re": _A_in["dft_hid_re"],
        "A_dft_hid_im": _A_in["dft_hid_im"],
        "B_x": _B_in["x"],
        "B_w1": _B_in["w1"],
        "B_w2": _B_in["w2"],
        "B_w3": _B_in["w3"],
        "B_w4": _B_in["w4"],
    }

def reference(A_x, A_dft_seq_re, A_dft_seq_im, A_dft_hid_re, A_dft_hid_im, B_x, B_w1, B_w2, B_w3, B_w4):
    def _A_ref(x, dft_seq_re, dft_seq_im, dft_hid_re, dft_hid_im):
        a = torch.einsum("bsd,ed->bse", x, dft_hid_re)
        b = torch.einsum("bsd,ed->bse", x, dft_hid_im)
        y = torch.einsum("ts,bse->bte", dft_seq_re, a) - torch.einsum("ts,bse->bte", dft_seq_im, b)
        return y

    def _B_ref(x, w1, w2, w3, w4):
        B, S, D = x.shape
        h = _gelu(_layernorm(x, axis=-1) @ w1)
        c = D // 4
        g0 = _pad(h[:, :, 0*c:1*c], ((0, 0), (1, 0), (0, 0)))[:, :S, :]
        g1 = _pad(h[:, :, 1*c:2*c], ((0, 0), (0, 1), (0, 0)))[:, 1:, :]
        g2 = _pad(h[:, :, 2*c:3*c], ((0, 0), (2, 0), (0, 0)))[:, :S, :]
        g3 = _pad(h[:, :, 3*c:   ], ((0, 0), (0, 2), (0, 0)))[:, 2:, :]
        hs = torch.concatenate([g0, g1, g2, g3], axis=-1) @ w2
        x1 = x + hs
        h2 = _gelu(_layernorm(x1, axis=-1) @ w3) @ w4
        return x1 + h2

    x = A_x
    xn = _layernorm(x, axis=-1)
    s = _A_ref(xn, A_dft_seq_re, A_dft_seq_im, A_dft_hid_re, A_dft_hid_im)
    g = _silu(_B_ref(xn, B_w1, B_w2, B_w3, B_w4))
    return x + s * g
```

```python
import re
def v(i,n=1): return f"v{i}" if n==1 else f"v[{i}:{i+n-1}]"
def a(i,n=1): return f"a{i}" if n==1 else f"a[{i}:{i+n-1}]"
def s(i,n=1): return f"s{i}" if n==1 else f"s[{i}:{i+n-1}]"
def R(i,n=1):
    return v(i,n) if i<256 else a(i-256,n)
_reg=re.compile(r'^(-|\|)?(?:abs\(|neg\()?([vas])(?:(\d+)|\[(\d+):(\d+)\])\)?\|?$')
def regs(tok):
    tok=tok.strip()
    if tok in('vcc',): return {('s',106),('s',107)}
    if tok=='vcc_lo': return {('s',106)}
    if tok=='vcc_hi': return {('s',107)}
    if tok=='exec': return {('s',126),('s',127)}
    if tok=='exec_lo': return {('s',126)}
    if tok=='exec_hi': return {('s',127)}
    if tok=='m0': return {('s',124)}
    m=_reg.match(tok)
    if not m: return set()
    k=m.group(2)
    if m.group(3) is not None: lo=hi=int(m.group(3))
    else: lo,hi=int(m.group(4)),int(m.group(5))
    return {(k,i) for i in range(lo,hi+1)}
TRANS=re.compile(r'^v_(exp|log|rcp|rsq|sqrt|sin|cos)_f(16|32)|^v_rcp_iflag')
class Ins:
    def __init__(self,text):
        self.text=text
        t=text.split(';')[0].strip()
        p=t.split(None,1); self.mn=p[0]
        rest=p[1] if len(p)>1 else ''
        ops=[o.strip() for o in rest.split(',')] if rest else []
        self.mods=''
        if ops:
            j=[];depth=0
            for o in ops:
                if depth>0: j[-1]+=','+o
                else: j.append(o)
                depth+=o.count('[')-o.count(']')
            ops=j
            last=ops[-1].split(None,1)
            ops[-1]=last[0]
            if len(last)>1: self.mods=last[1]
        self.ops=ops
        mn=self.mn
        self.mfma=mn.startswith('v_mfma')
        self.valu=mn.startswith('v_') and not self.mfma
        self.trans=bool(TRANS.match(mn))
        self.dot=mn.startswith('v_dot')
        self.salu=mn.startswith('s_')
        self.vmem=mn.startswith(('buffer_','global_','flat_'))
        self.ds=mn.startswith('ds_')
        self.dpp=('quad_perm' in self.mods or 'row_' in self.mods or 'wave_' in self.mods or mn.endswith('_dpp'))
        self.perm=mn.startswith('v_permlane')
        self.lds_dma=self.vmem and (' lds' in ' '+self.mods or '_lds_' in mn)
        self.passes=0
        if self.mfma: self.passes=8 if '32x32' in mn else 4
        R_=[regs(o) for o in ops]
        d=set();u=set()
        self.srcC=set();self.srcAB=set();self.sdata=set()
        if self.mfma:
            d=R_[0]; self.srcAB=R_[1]|R_[2]; self.srcC=R_[3]; u=self.srcAB|self.srcC
        elif self.valu:
            if mn.startswith('v_nop'): pass
            else:
                d=set(R_[0]); srcs=R_[1:]
                if '_co_' in mn or mn.startswith(('v_div_scale','v_mad_u64','v_mad_i64')):
                    d|=R_[1]; srcs=R_[2:]
                for x in srcs: u|=x
                if mn.startswith(('v_fmac','v_mac','v_dot2c','v_pk_fmac','v_writelane','v_swap')) or self.perm or self.dpp or 'sdwa' in mn or 'dst_sel' in self.mods: u|=R_[0]
                if mn.startswith('v_swap') or '_swap_' in mn: d|=R_[1]
                if mn.startswith('v_cmpx'): d|=regs('exec')
                if mn.startswith(('v_cndmask','v_addc','v_subb')) and len(ops)<4: u|=regs('vcc')
        elif self.vmem:
            if 'wbl2' in mn or '_inv' in mn: pass
            elif self.lds_dma:
                for x in R_: u|=x
                u|=regs('m0')
            elif '_load' in mn:
                d=R_[0]
                for x in R_[1:]: u|=x
            elif 'atomic' in mn:
                for x in R_: u|=x
                if 'sc0' in self.mods: d=R_[0]
            else:
                for x in R_: u|=x
                di=0 if mn.startswith('buffer_') else 1
                if mn.endswith(('x3','x4')): self.sdata=R_[di]
        elif self.ds:
            if mn.startswith(('ds_read','ds_bpermute','ds_permute','ds_swizzle')) or '_rtn' in mn:
                d=R_[0]
                for x in R_[1:]: u|=x
            else:
                for x in R_: u|=x
            if 'addtid' in mn: u|=regs('m0')
        elif self.salu:
            if mn.startswith(('s_cmp','s_bitcmp','s_waitcnt','s_nop','s_barrier','s_branch','s_cbranch','s_endpgm','s_sleep','s_setprio','s_setreg')):
                for x in R_: u|=x
            else:
                if R_: d=set(R_[0])
                for x in R_[1:]: u|=x
                if 'saveexec' in mn: d|=regs('exec'); u|=regs('exec')
        self.d=d;self.u=u
        self.states=1
        if mn=='s_nop': self.states=int(ops[0],0)+1
def isv(x): return {r for r in x if r[0] in 'va'}
def iss(x): return {r for r in x if r[0]=='s'}
EXEC=regs('exec')
def need(p,c):
    n=0
    if p.valu:
        sd=iss(p.d); vd=isv(p.d)
        if sd:
            if c.vmem and sd&c.u: n=max(n,5)
            if c.valu and sd&c.u: n=max(n,4 if c.mn.startswith(('v_readlane','v_writelane')) else 2)
            if c.mn.startswith('v_div_fmas'): n=max(n,4)
            if c.salu and sd&c.u: n=max(n,1)
            if sd&EXEC:
                if c.dpp: n=max(n,5)
                if c.mfma or c.perm or c.mn.startswith(('v_readlane','v_readfirstlane','v_writelane')): n=max(n,4)
        if vd&c.u:
            if c.dpp or c.perm or c.mfma: n=max(n,2)
            if c.mn.startswith(('v_readlane','v_readfirstlane')): n=max(n,1)
            if p.trans and c.valu and not c.trans: n=max(n,1)
            if ('op_sel' in p.mods and not p.mn.startswith('v_pk')) or 'dst_sel' in p.mods:
                if c.valu: n=max(n,1)
        if p.dot and (vd&(c.u|c.d)):
            if c.mn==p.mn and not (vd&set().union(*[regs(o) for o in c.ops[1:3]])): pass
            else: n=max(n,3)
    if p.salu and ('s',124) in p.d and ('s',124) in c.u and (c.vmem or c.ds): n=max(n,1)
    if p.sdata and (p.sdata&c.d): n=max(n,2 if c.valu else 1)
    if p.mfma:
        big=p.passes==8
        if c.mfma:
            if p.d&c.srcAB: n=max(n,12 if big else 8)
            if p.d&c.srcC and not (p.d==c.srcC and p.passes==c.passes): n=max(n,10 if big else 6)
            if p.d&c.d and not (p.d&c.srcC): n=max(n,10 if big else 6)
        elif c.valu or c.vmem or c.ds:
            if p.d&(c.u|c.d): n=max(n,12 if big else 8)
            if c.valu and p.srcC&c.d: n=max(n,7 if big else 3)
    return n
class Asm:
    def __init__(self):
        self.items=[]; self.uid=0; self.cond=0
    def __call__(self,text,tag=None):
        if isinstance(text,(list,tuple)):
            for t in text:
                if isinstance(t,tuple): self.items.append(t)
                else: self(t)
            return
        for it in parse(text,tag):
            if it[0]=='i' and self.cond: it[1].cond=True
            self.items.append(it)
    def wait(self,tag): self.items.append(W(tag))
    def lab(self,p='L'):
        self.uid+=1; return f"{p}_{self.uid}"
    def _autowait(self):
        out=[]; vm=[]; lg=[]
        seen=set()
        def emit(nv,nl):
            parts=[]
            if nv is not None and nv<=63 and nv<len(vm): parts.append(f"vmcnt({nv})")
            if nl is not None and nl<=15 and nl<len(lg): parts.append(f"lgkmcnt({nl})")
            if nl is not None and nl>15 and nl<len(lg): parts.append("lgkmcnt(15)")
            if nv is not None and nv>63 and nv<len(vm): parts.append("vmcnt(63)")
            return parts
        for k,x in self.items:
            if k=='w':
                assert x in seen, f"wait for unknown tag {x}"
                nv=nl=None
                for q,op in enumerate(vm):
                    if op.tag==x: nv=len(vm)-1-q
                for q,op in enumerate(lg):
                    if op.tag==x: nl=len(lg)-1-q
                p=emit(nv,nl)
                if p:
                    out.append(('i',Ins("s_waitcnt "+" ".join(p))))
                    if nv is not None: vm=vm[len(vm)-nv:] if nv else []
                    if nl is not None: lg=lg[len(lg)-nl:] if nl else []
                continue
            if k!='i': out.append((k,x)); continue
            cond=getattr(x,'cond',False)
            if x.mn=='s_waitcnt':
                if not cond:
                    m=re.search(r'vmcnt\((\d+)\)',x.text)
                    if m: n=int(m.group(1)); vm=vm[len(vm)-n:] if 0<n<len(vm) else ([] if n==0 else vm)
                    m=re.search(r'lgkmcnt\((\d+)\)',x.text)
                    if m: n=int(m.group(1)); lg=lg[len(lg)-n:] if 0<n<len(lg) else ([] if n==0 else lg)
                out.append((k,x)); continue
            touched=isv(x.u|x.d)
            nv=nl=None
            if touched:
                for q,op in enumerate(vm):
                    if op.d&touched and not (x.vmem and not (op.d&isv(x.u))): nv=len(vm)-1-q
                for q,op in enumerate(lg):
                    if op.d&touched and not (x.ds and not (op.d&isv(x.u))): nl=len(lg)-1-q
            p=emit(nv,nl)
            if p:
                wi=Ins("s_waitcnt "+" ".join(p)); wi.cond=cond
                out.append(('i',wi))
                if not cond:
                    if nv is not None: vm=vm[len(vm)-nv:] if nv else []
                    if nl is not None: lg=lg[len(lg)-nl:] if nl else []
            out.append((k,x))
            if getattr(x,'tag',None): seen.add(x.tag)
            if not cond:
                if x.vmem: vm.append(x)
                if x.ds: lg.append(x)
        self.items=out
    def finish(self):
        self._autowait()
        items=self.items
        out=[]
        br={}
        for k,x in items:
            if k=='i' and x.mn.startswith(('s_branch','s_cbranch')): br.setdefault(x.ops[0],[]).append(x)
        pad={}
        pos={id(x):n for n,(k,x) in enumerate(items) if k=='i'}
        def back(n,dist,c,seen):
            best=0
            while n>0 and dist<20:
                n-=1
                k,x=items[n]
                if k=='l':
                    for b in br.get(x,[]):
                        key=(id(b),dist)
                        if key in seen: continue
                        seen.add(key)
                        best=max(best,back(pos[id(b)],dist+1+pad.get(id(b),0),c,seen))
                elif k=='i':
                    if x.mn in('s_branch','s_endpgm','s_setpc_b64'): return best
                    best=max(best,need(x,c)-dist)
                    dist+=x.states+pad.get(id(x),0)
            return best
        nn=0;ni=0
        for n,(k,x) in enumerate(items):
            if k=='i':
                e=back(n,0,x,set())
                if e>0:
                    pad[id(x)]=e; nn+=e
                    while e>0:
                        q=min(e,16); out.append(f"    s_nop {q-1}"); e-=q
                out.append('    '+x.text); ni+=1
            elif k=='l': out.append(x+':')
            else: out.append(x)
        self.nops=nn; self.nins=ni
        return '\n'.join(out)+'\n'
def W(tag): return ('w',tag)
def parse(text,tag=None):
    r=[]
    for ln in text.split('\n'):
        ln=ln.strip()
        if not ln: continue
        if ln.startswith(';'): r.append(('t','    '+ln)); continue
        if ln.endswith(':'): r.append(('l',ln[:-1])); continue
        if ln.startswith('.'): r.append(('t',ln)); continue
        i=Ins(ln); i.tag=tag; i.cond=False; r.append(('i',i))
    return r
class L(list):
    def __call__(self,text,tag=None):
        if isinstance(text,list): self.extend(text)
        else: self.extend(parse(text,tag))
        return self
    def wait(self,tag): self.append(W(tag)); return self
def cost(it):
    if it[0]!='i': return 1 if it[0]=='w' else 0
    return 2 if it[1].trans else 1
def interleave(main,fill,per,start=0):
    out=L(); fi=0
    for g,grp in enumerate(main):
        out.extend(grp)
        if g<start: continue
        budget=per-sum(cost(x) for x in grp if not (x[0]=='i' and x[1].mfma))
        while fi<len(fill) and budget>0:
            budget-=cost(fill[fi]); out.append(fill[fi]); fi+=1
    out.extend(fill[fi:])
    return out
class RA:
    def __init__(self,lo,hi):
        self.free_=set(range(lo,hi)); self.peak=0; self.own={}
    def alloc(self,n=1,al=None):
        al=al or (1 if n==1 else 2)
        for b in sorted(self.free_):
            if b%al==0 and all((b+i) in self.free_ for i in range(n)):
                for i in range(n): self.free_.discard(b+i)
                self.own[b]=n; self.peak=max(self.peak,b+n); return b
        raise RuntimeError(f"out of regs for {n}; free {len(self.free_)}")
    def free(self,*bs):
        for b in bs:
            n=self.own.pop(b)
            for i in range(n): self.free_.add(b+i)
def kernel_text(name,body,nvgpr,accum,nsgpr=100):
    code=f""".text
.globl {name}
.p2align 8
.type {name},@function
{name}:
{body}"""
    kd=f""".section .rodata,"a"
.p2align 6
.amdhsa_kernel {name}
  .amdhsa_next_free_vgpr {nvgpr}
  .amdhsa_next_free_sgpr {nsgpr}
  .amdhsa_accum_offset {accum}
  .amdhsa_group_segment_fixed_size 0
  .amdhsa_kernarg_size 104
  .amdhsa_user_sgpr_count 2
  .amdhsa_user_sgpr_kernarg_segment_ptr 1
  .amdhsa_system_sgpr_workgroup_id_x 1
  .amdhsa_float_denorm_mode_32 3
.end_amdhsa_kernel
"""
    return code,kd
def file_text(kernels,header=''):
    L=[header] if header else []
    if len(kernels)==1 and kernels[0][0].startswith('recurrent_scan'):
        k=kernels[0]; L.append(f"; @launch grid=({k[1]},1,1) block=({k[2]},1,1) lds={k[3]}")
    else:
        for k in kernels: L.append(f"; @launch kernel={k[0]} grid=({k[1]},1,1) block=({k[2]},1,1) lds={k[3]}")
    L.append('.amdgcn_target "amdgcn-amd-amdhsa--gfx950"')
    kds=[]
    for k in kernels:
        if k[4] is None: continue
        c,kd=kernel_text(k[0],k[4],k[5],k[6]); L.append(c); kds.append(kd)
    return '\n'.join(L)+'\n'+''.join(kds)
```

```python
import sys, struct, math
from asmlib import *
KNAME='recurrent_scan__spectral_fnet__mixer_s_mlp__prompt_kernel'
def fb(x): return '0x%08x'%struct.unpack('<I',struct.pack('<f',x))[0]
FLG=0; FYO=4096; HB=0x100000; X1B=0x300000; STB=0x500000; YB=0x600000; H3B=0x800000; DBGB=0x1000000; WSN=0x2000000
OOB=0x40000000
XB=0; XS=20480; WB=81920; SP=147456; STL=SP; YT=SP+4096; R1L=SP+12800
PBA=WB; SBL=WB+34816; PBB=XB
LDSN=163840
sX,sW1,sW2,sW3,sW4,sOUT,sWS,sDBG=4,8,12,16,20,24,28,32
sC,sJ,sW,sPAIR,sCNT=36,37,38,39,40
sT=41
sSO,sSO2=56,57
C1=-2*math.sqrt(2/math.pi)*math.log2(math.e); C2=C1*0.044715
def srd(i): return s(i,4)
def gen(stamps=False,opt=None):
    opt=opt or {}
    A=Asm(); V=RA(1,256)
    nst=[0]
    def stamp(name=''):
        if stamps and name not in opt.get('nostamp',['issued','x1st']):
            A(f"s_memrealtime s[{64+2*nst[0]}:{65+2*nst[0]}]"); nst[0]+=1; assert nst[0]<=18
            gen.names.append(name)
    gen.names=[]
    stamp('start')
    A("s_cmp_ge_u32 s2, 256\ns_cbranch_scc1 Lend")
    for r,o in ((sW1,48),(sX,0),(sWS,96),(sW2,56),(sW3,64),(sW4,72),(sOUT,80),(sDBG,88)):
        A(f"s_load_dwordx2 {s(r,2)}, s[0:1], {o}")
    dmy=V.alloc(1); t0=V.alloc(2)
    tmp=V.alloc(8,4); pk=V.alloc(8,4); ones=V.alloc(4,4); Ax=V.alloc(4,4); Bx=V.alloc(6,2); vTB=V.alloc(2)
    vPoll=V.alloc(1); vSigA=V.alloc(1); vOne=V.alloc(1); vCh=V.alloc(1)
    A(f"s_getpc_b64 s[{sT+1}:{sT+2}]\nLpc:")
    A(f"v_lshlrev_b32 {v(t0)}, 7, v0\nv_min_u32 {v(t0)}, Lend-Lpc, {v(t0)}\nv_mov_b32 {v(t0+1)}, 0")
    A(f"v_lshl_add_u64 {v(t0,2)}, {v(t0,2)}, 0, s[{sT+1}:{sT+2}]")
    A(f"global_load_dword {v(dmy)}, {v(t0,2)}, off")
    V.free(t0)
    A(f"s_and_b32 s{sT}, s2, 7\ns_lshr_b32 s{sT+1}, s2, 3\ns_lshl_b32 s{sC}, s{sT}, 2\ns_lshr_b32 s{sT+2}, s{sT+1}, 3\ns_add_u32 s{sC}, s{sC}, s{sT+2}\ns_and_b32 s{sJ}, s{sT+1}, 7")
    t=V.alloc(1); t2=V.alloc(1); t3=V.alloc(1)
    A(f"v_lshrrev_b32 {v(t)}, 6, v0\nv_and_b32 v0, 63, v0\nv_readfirstlane_b32 s{sW}, {v(t)}")
    for r,n in ((sX,2097152),(sW1,524288),(sW2,524288),(sW3,1835008),(sW4,1835008),(sOUT,2097152),(sWS,WSN),(sDBG,256)):
        A(f"s_mov_b32 s{r+2}, {n}\ns_mov_b32 s{r+3}, 0x20000")
    vL16=V.alloc(1); vRow8=V.alloc(1); vSlot=V.alloc(1); vN=V.alloc(1); vQ=V.alloc(1)
    A(f"v_lshlrev_b32 {v(vL16)}, 4, v0\nv_lshrrev_b32 {v(vRow8)}, 3, v0\nv_and_b32 {v(vSlot)}, 7, v0\nv_and_b32 {v(vN)}, 15, v0\nv_lshrrev_b32 {v(vQ)}, 4, v0")
    vD=V.alloc(4)
    A(f"s_and_b32 s{sT}, s{sW}, 1\ns_lshl_b32 s{sT}, s{sT}, 2")
    A(f"v_and_b32 {v(t)}, 2, {v(vRow8)}\nv_or_b32 {v(t)}, s{sT}, {v(t)}\nv_xor_b32 {v(t)}, {v(t)}, {v(vSlot)}\nv_lshlrev_b32 {v(t)}, 4, {v(t)}\nv_lshl_add_u32 {v(vD)}, {v(vRow8)}, 10, {v(t)}")
    A(f"v_lshrrev_b32 {v(t)}, 1, {v(vRow8)}\nv_xor_b32 {v(t)}, {v(t)}, {v(vSlot)}\nv_lshlrev_b32 {v(t)}, 4, {v(t)}\nv_lshl_add_u32 {v(vD+1)}, {v(vRow8)}, 16, {v(t)}")
    A(f"v_xor_b32 {v(vD+2)}, 64, {v(vD+1)}\nv_add_u32 {v(vD+2)}, {8*65536}, {v(vD+2)}")
    A(f"s_lshl_b32 s{sSO}, s{sW}, 13\ns_lshl_b32 s{sT}, s{sJ}, 7\ns_add_u32 s{sSO}, s{sSO}, s{sT}")
    A(f"s_lshl_b32 s{sT}, s{sW}, 10\ns_add_u32 m0, s{sT}, {WB}")
    A("s_waitcnt lgkmcnt(0)")
    stamp('karg')
    zer=tmp
    A(f"s_lshl_b32 s{sT}, s2, 2\ns_add_u32 s{sT+14}, s{sT}, s{sW}\ns_cmp_lg_u32 s{sT+14}, 3\ns_cbranch_scc1 Lnoinit")
    A.cond=1
    for i in range(4): A(f"v_mov_b32 {v(zer+i)}, 0")
    for i in range(4): A(f"buffer_store_dwordx4 {v(zer,4)}, {v(vL16)}, {srd(sWS)}, 0 offen offset:{i*1024} sc1")
    A(f"s_mov_b32 s{sT}, 4096\nbuffer_store_dwordx4 {v(zer,4)}, {v(vL16)}, {srd(sWS)}, s{sT} offen sc1")
    A.cond=0
    A("Lnoinit:")
    for ks in range(16):
        A(f"buffer_load_dwordx4 {v(vD)}, {srd(sW1)}, s{sSO} offen lds",tag=f'w1_{ks//4}')
        if ks<15: A(f"s_add_u32 s{sSO}, s{sSO}, 32768\ns_add_u32 m0, m0, 4096")
    A(f"s_lshr_b32 s{sT}, s{sW}, 1\ns_lshl_b32 s{sT}, s{sT}, 5\ns_add_u32 s{sT}, s{sT}, s{sC}\ns_and_b32 s{sT+1}, s{sW}, 1\ns_lshl_b32 s{sT+1}, s{sT+1}, 10\ns_add_u32 s{sT+13}, s{sT}, s{sT+1}")
    A(f"s_lshl_b32 s{sSO}, s{sT+13}, 10\ns_mul_i32 s{sT+12}, s{sW}, {XS}\ns_mov_b32 m0, s{sT+12}")
    sROW0=sT+13; sXA=sT+12
    for blk in range(8):
        A(f"buffer_load_dwordx4 {v(vD+1)}, {srd(sX)}, s{sSO} offen lds\ns_add_u32 m0, m0, 1024")
        A(f"buffer_load_dwordx4 {v(vD+2)}, {srd(sX)}, s{sSO} offen lds",tag=f'x_{blk}')
        if blk<7: A(f"s_add_u32 m0, m0, 1024\ns_add_u32 s{sSO}, s{sSO}, 128")
    if opt.get('touch',1):
        A(f"v_lshlrev_b32 {v(t)}, 7, v0\nv_mov_b32 {v(t3)}, {OOB}\nv_cmp_gt_u32 vcc, 14, v0\nv_cndmask_b32 {v(t2)}, {v(t3)}, {v(t)}, vcc")
        A(f"v_cmp_gt_u32 vcc, 4, v0\nv_cndmask_b32 {v(t3)}, {v(t3)}, {v(t)}, vcc")
        A(f"s_mul_i32 s{sT}, s{sT+14}, {4*128}\ns_mul_i32 s{sT+1}, s{sT+14}, {14*128}")
        A(f"buffer_load_dword {v(dmy)}, {v(t3)}, {srd(sW2)}, s{sT} offen\nbuffer_load_dword {v(dmy)}, {v(t2)}, {srd(sW3)}, s{sT+1} offen\nbuffer_load_dword {v(dmy)}, {v(t2)}, {srd(sW4)}, s{sT+1} offen")
    stamp('issued')
    vTA=V.alloc(4)
    vRR=V.alloc(1)
    A(f"v_bfe_u32 {v(vRR)}, v0, 2, 2")
    A(f"v_bfe_u32 {v(t)}, v0, 3, 2\nv_lshlrev_b32 {v(t)}, 5, {v(t)}\nv_and_b32 {v(t2)}, 3, v0\nv_lshl_add_u32 {v(t)}, {v(t2)}, 3, {v(t)}\nv_lshl_add_u32 {v(t)}, {v(vRR)}, 7, {v(t)}")
    A(f"v_lshl_add_u32 {v(t)}, {v(vQ)}, 10, {v(t)}\nv_add_u32 {v(vTA)}, {WB}, {v(t)}")
    for T in range(1,4): A(f"v_xor_b32 {v(vTA+T)}, {32*T}, {v(vTA)}")
    vXA=V.alloc(2)
    A(f"v_lshrrev_b32 {v(t)}, 1, {v(vN)}\nv_xor_b32 {v(t)}, {v(t)}, {v(vQ)}\nv_lshlrev_b32 {v(t)}, 4, {v(t)}\nv_lshl_add_u32 {v(vXA)}, {v(vN)}, 7, {v(t)}\nv_xor_b32 {v(vXA+1)}, 64, {v(vXA)}")
    vXW=V.alloc(2)
    A(f"v_add_u32 {v(vXW)}, s{sXA}, {v(vXA)}\nv_add_u32 {v(vXW+1)}, s{sXA}, {v(vXA+1)}")
    for i in range(4): A(f"v_mov_b32 {v(ones+i)}, 0x3f803f80")
    Wd=V.alloc(32,4); F32=V.alloc(16,4); ang=V.alloc(8); tr=V.alloc(8); vSig=V.alloc(1); vSgn=V.alloc(1); step=V.alloc(2)
    A(f"s_lshl_b32 s{sT}, s{sJ}, 5\ns_lshl_b32 s{sT+1}, s{sW}, 3\ns_add_u32 s{sT}, s{sT}, s{sT+1}")
    A(f"v_lshrrev_b32 {v(t)}, 1, {v(vN)}\nv_add_u32 {v(t)}, s{sT}, {v(t)}\nv_mov_b32 {v(t2)}, 256\nv_cmp_eq_u32 vcc, 0, {v(t)}\nv_cndmask_b32 {v(t)}, {v(t)}, {v(t2)}, vcc")
    A(f"v_and_b32 {v(t2)}, 1, {v(t)}\nv_lshlrev_b32 {v(t2)}, 31, {v(t2)}\nv_or_b32 {v(vSig)}, 1.0, {v(t2)}")
    A(f"v_cvt_f32_u32 {v(t)}, {v(t)}\nv_mul_f32 {v(t)}, {fb(1/512)}, {v(t)}")
    A(f"v_and_b32 {v(t2)}, 1, v0\nv_mul_u32_u24 {v(vSgn)}, 0x8001, {v(t2)}\nv_lshlrev_b32 {v(vSgn)}, 15, {v(vSgn)}")
    A(f"v_mul_u32_u24 {v(vSgn)}, 0x10001, {v(t2)}\nv_lshlrev_b32 {v(vSgn)}, 15, {v(vSgn)}")
    A(f"v_cvt_f32_u32 {v(t2)}, {v(t2)}\nv_mul_f32 {v(t2)}, 0x3e800000, {v(t2)}")
    A(f"v_cvt_f32_u32 {v(t3)}, {v(vQ)}\nv_mul_f32 {v(step)}, 0x41000000, {v(t3)}\nv_fma_f32 {v(ang)}, {v(step)}, {v(t)}, {v(t2)}")
    for jj in range(1,8): A(f"v_add_f32 {v(ang+jj)}, {v(ang+jj-1)}, {v(t)}")
    A(f"v_mul_f32 {v(step)}, 0x42000000, {v(t)}")
    for ks in range(8):
        for jj in range(8): A(f"v_cos_f32 {v(tr+jj)}, {v(ang+jj)}")
        if ks<7:
            for jj in range(0,8,2): A(f"v_pk_add_f32 {v(ang+jj,2)}, {v(ang+jj,2)}, {v(step,2)} op_sel_hi:[1,0]")
        for jj in range(0,8,2): A(f"v_cvt_pk_bf16_f32 {v(Wd+4*ks+jj//2)}, {v(tr+jj)}, {v(tr+jj+1)}")
    for tau in range(2):
        A(f"v_add_u32 {v(t)}, {16*tau}, {v(vN)}\nv_cvt_f32_u32 {v(t)}, {v(t)}\nv_mul_f32 {v(t)}, {fb(1/32)}, {v(t)}\nv_mul_f32 {v(t2)}, 4.0, {v(t3)}\nv_mul_f32 {v(ang)}, {v(t2)}, {v(t)}")
        for jj in range(1,8): A(f"v_fmamk_f32 {v(ang+jj)}, {v(t)}, {fb(16*(jj//4)+jj%4)}, {v(ang)}")
        for fn,o in (('cos',0),('sin',8)):
            for jj in range(8): A(f"v_{fn}_f32 {v(tr+jj)}, {v(ang+jj)}")
            for jj in range(0,8,2): A(f"v_cvt_pk_bf16_f32 {v(F32+o+4*tau+jj//2)}, {v(tr+jj)}, {v(tr+jj+1)}")
    V.free(ang,tr,step)
    vHA=V.alloc(1); vHM=V.alloc(1); sCD=58
    A(f"s_lshr_b32 s{sT}, s{sJ}, 2\ns_add_u32 s{sT}, s{sT}, 1\ns_sub_u32 s{sT+1}, 0, s{sT}\ns_bitcmp1_b32 s{sJ}, 1\ns_cselect_b32 s{sT}, s{sT+1}, s{sT}")
    A(f"s_add_u32 s{sCD}, s{sC}, s{sT}\ns_and_b32 s{sCD}, s{sCD}, 31\ns_add_u32 s{sT}, s{sT}, s{sROW0}")
    A(f"v_lshl_add_u32 {v(t)}, {v(vN)}, 6, s{sT}\nv_cmp_gt_u32 vcc, 0x800, {v(t)}\nv_cndmask_b32 {v(vHM)}, 0, -1, vcc")
    A(f"v_bfe_u32 {v(t2)}, {v(t)}, 5, 1\nv_lshlrev_b32 {v(t2)}, 15, {v(t2)}\nv_bfe_u32 {v(t3)}, {v(t)}, 10, 1\nv_lshl_add_u32 {v(t2)}, {v(t3)}, 14, {v(t2)}")
    A(f"v_bfe_u32 {v(t3)}, {v(t)}, 6, 4\nv_lshl_add_u32 {v(t2)}, {v(t3)}, 4, {v(t2)}\nv_lshl_add_u32 {v(vHA)}, {v(vQ)}, 8, {v(t2)}")
    sHS=59
    A(f"s_lshl_b32 s{sHS}, s{sCD}, 16\ns_lshl_b32 s{sT}, s{sJ}, 11\ns_add_u32 s{sHS}, s{sHS}, s{sT}\ns_add_u32 s{sHS}, s{sHS}, {HB}")
    A(f"v_lshlrev_b32 {v(vPoll)}, 2, {v(vSlot)}\nv_mov_b32 {v(t)}, {OOB}\nv_cmp_eq_u32 vcc, 0, v0\nv_cndmask_b32 {v(vSigA)}, {v(t)}, 0, vcc\nv_mov_b32 {v(vOne)}, 1")
    A(f"v_and_b32 {v(t)}, 6, {v(vRow8)}\nv_xor_b32 {v(t)}, {v(t)}, {v(vSlot)}\nv_lshlrev_b32 {v(t)}, 4, {v(t)}\nv_lshl_add_u32 {v(vD)}, {v(vRow8)}, 10, {v(t)}")
    for i in range(1,4): A(f"v_add_u32 {v(vD+i)}, {i*7168}, {v(vD)}")
    stamp('gen')
    cs=V.alloc(16,4); acc=V.alloc(16,4)
    for ch in range(4):
        A.wait(f'w1_{ch}'); A("s_barrier")
        if ch==0:
            A(f"s_cmp_lg_u32 s{sT+14}, 3\ns_cbranch_scc1 Lnoinit2"); A.cond=1
            A(f"buffer_store_dword {v(vOne)}, {v(vSigA)}, {srd(sDBG)}, 0 offen sc1"); A.cond=0; A("Lnoinit2:")
        rd=L();
        seq=[(ks,T) for ks in range(4*ch,4*ch+4) for T in range(4)]
        def rdA(ks,T): return f"ds_read_b64_tr_b16 {a((ks*4+T)*4,2)}, {v(vTA+T)} offset:{ks*4096}\nds_read_b64_tr_b16 {a((ks*4+T)*4+2,2)}, {v(vTA+T)} offset:{ks*4096+512}"
        D=4
        for i in range(D): A(rdA(*seq[i]))
        for i,(ks,T) in enumerate(seq):
            if i+D<len(seq): A(rdA(*seq[i+D]))
            A(f"v_mfma_f32_16x16x32_bf16 {v(cs+4*T,4)}, {a((ks*4+T)*4,4)}, {v(ones,4)}, {v(cs+4*T,4) if ks else 0}")
    A("s_barrier")
    stamp('w1rd')
    A(f"s_lshl_b32 s{sSO}, s{sW}, 17\ns_lshl_b32 s{sT}, s{sJ}, 7\ns_add_u32 s{sSO}, s{sSO}, s{sT}\ns_lshl_b32 s{sT}, s{sW}, 14\ns_add_u32 m0, s{sT}, {WB}")
    w2l=L()
    for k in range(4):
        for i in range(4): w2l(f"buffer_load_dwordx4 {v(vD+i)}, {srd(sW2)}, s{sSO} offen offset:{i*1024} lds",tag='w2')
        if k<3: w2l(f"s_add_u32 s{sSO}, s{sSO}, 32768\ns_add_u32 m0, m0, 4096")
    A(w2l)
    xb=V.alloc(16,4); S1=V.alloc(1); S2=V.alloc(1)
    A(f"v_mov_b32 {v(S1)}, 0\nv_mov_b32 {v(S2)}, 0")
    def rdX(ks):
        r=L()
        if ks%2==0: r.wait(f'x_{ks//2}')
        return r(f"ds_read_b128 {v(xb+4*(ks%4),4)}, {v(vXW+ks%2)} offset:{(ks//2)*2048}")
    A(rdX(0)); A(rdX(1))
    for ks in range(16):
        if ks+2<16: A(rdX(ks+2))
        b=xb+4*(ks%4)
        for T in range(4):
            A(f"v_mfma_f32_16x16x32_bf16 {v(acc+4*T,4)}, {a((ks*4+T)*4,4)}, {v(b,4)}, {v(acc+4*T,4) if ks else 0}")
            A(f"v_dot2c_f32_bf16 {v(S1)}, {v(ones)}, {v(b+T)}\nv_dot2c_f32_bf16 {v(S2)}, {v(b+T)}, {v(b+T)}")
    V.free(xb)
    stamp('g1')
    def allred(x,tmp):
        A(f"v_mov_b32 {v(tmp)}, {v(x)}\nv_permlane16_swap_b32 {v(x)}, {v(tmp)}\nv_add_f32 {v(x)}, {v(x)}, {v(tmp)}")
        A(f"v_mov_b32 {v(tmp)}, {v(x)}\nv_permlane32_swap_b32 {v(x)}, {v(tmp)}\nv_add_f32 {v(x)}, {v(x)}, {v(tmp)}")
    allred(S1,t); allred(S2,t2)
    mu=V.alloc(2); r1=V.alloc(2); K=V.alloc(6)
    A(f"v_mul_f32 {v(mu)}, {fb(-1/512)}, {v(S1)}\nv_mul_f32 {v(t)}, {v(mu)}, {v(mu)}\nv_fma_f32 {v(t)}, {v(S2)}, s60, -{v(t)}".replace('s60','s%d'%60))
    A.items.insert(len(A.items)-3,parse(f"s_mov_b32 s60, {fb(1/512)}")[0])
    A(f"v_max_f32 {v(t)}, 0, {v(t)}\nv_add_f32 {v(t2)}, {fb(1e-5)}, {v(t)}\nv_rsq_f32 {v(r1)}, {v(t2)}")
    A(f"v_mul_f32 {v(t2)}, {v(r1)}, {v(r1)}\nv_fmaak_f32 {v(t2)}, {v(t2)}, {v(t)}, {fb(1e-5)}\nv_rsq_f32 {v(t2)}, {v(t2)}\nv_mul_f32 {v(t2)}, {v(t2)}, {v(r1)}")
    def gelu_consts(Rr,K,tmp,out):
        out(f"v_rcp_f32 {v(K+4)}, {v(Rr)}\nv_mul_f32 {v(K)}, {fb(C1)}, {v(Rr)}\nv_mul_f32 {v(tmp)}, {v(Rr)}, {v(Rr)}\nv_mul_f32 {v(tmp)}, {v(tmp)}, {v(Rr)}\nv_mul_f32 {v(K+2)}, {fb(C2)}, {v(tmp)}")
    gelu_consts(t2,K,t3,A)
    def gelu(src,n,K,tmp,dst):
        r=L()
        for g in range(0,n,8):
            x=src+g
            for i in range(0,8,2): r(f"v_pk_mul_f32 {v(tmp+i,2)}, {v(x+i,2)}, {v(x+i,2)}")
            for i in range(0,8,2): r(f"v_pk_fma_f32 {v(tmp+i,2)}, {v(tmp+i,2)}, {v(K+2,2)}, {v(K,2)} op_sel_hi:[1,0,0]")
            for i in range(0,8,2): r(f"v_pk_mul_f32 {v(tmp+i,2)}, {v(tmp+i,2)}, {v(x+i,2)}")
            for i in range(8): r(f"v_exp_f32 {v(tmp+i)}, {v(tmp+i)}")
            for i in range(0,8,2): r(f"v_pk_fma_f32 {v(tmp+i,2)}, {v(tmp+i,2)}, {v(K+4,2)}, {v(K+4,2)} op_sel_hi:[1,0,0]")
            for i in range(8): r(f"v_rcp_f32 {v(tmp+i)}, {v(tmp+i)}")
            for i in range(0,8,2): r(f"v_pk_mul_f32 {v(tmp+i,2)}, {v(tmp+i,2)}, {v(x+i,2)}")
            for i in range(0,8,2): r(f"v_cvt_pk_bf16_f32 {v(dst+g//2+i//2)}, {v(tmp+i)}, {v(tmp+i+1)}")
        return r
    for i in range(0,16,2): A(f"v_pk_fma_f32 {v(acc+i,2)}, {v(cs+i,2)}, {v(mu,2)}, {v(acc+i,2)} op_sel_hi:[1,0,1]")
    for pi in range(2):
        A(gelu(acc+8*pi,8,K,tmp,pk+4*pi))
        for i in range(4): A(f"v_and_b32 {v(pk+4*pi+i)}, {v(vHM)}, {v(pk+4*pi+i)}")
        A(f"buffer_store_dwordx4 {v(pk+4*pi,4)}, {v(vHA)}, {srd(sWS)}, s{sHS} offen offset:{pi*1024} sc1",tag='hst')
    V.free(cs,vHA,vHM,S1,S2,K)
    stamp('hst')
    A(f"s_lshl_b32 s{sT}, s{sW}, 6\ns_add_u32 s{sT}, s{sT}, {R1L}\nv_lshl_add_u32 {v(t)}, {v(vN)}, 2, s{sT}\nds_write_b32 {v(t)}, {v(r1)}")
    A(f"v_lshrrev_b32 {v(t)}, 1, {v(vN)}\nv_lshrrev_b32 {v(t2)}, 1, {v(vQ)}\nv_xor_b32 {v(t)}, {v(t)}, {v(t2)}\nv_lshlrev_b32 {v(t)}, 4, {v(t)}\nv_lshl_add_u32 {v(t)}, {v(vN)}, 7, {v(t)}")
    A(f"v_and_b32 {v(t2)}, 1, {v(vQ)}\nv_lshl_add_u32 {v(t)}, {v(t2)}, 3, {v(t)}\ns_lshl_b32 s{sT}, s{sJ}, 11\ns_add_u32 s{sT}, s{sT}, s{sXA}\nv_add_u32 {v(t)}, s{sT}, {v(t)}")
    for T in range(4):
        if T: A(f"v_xor_b32 {v(t2)}, {32*T}, {v(t)}")
        A(f"ds_read_b64 {v(tmp+2*T,2)}, {v(t2 if T else t)}")
    A(f"v_mul_f32 {v(mu)}, {v(mu)}, {v(r1)}")
    for i in range(8): A(f"v_lshlrev_b32 {v(acc+2*i)}, 16, {v(tmp+i)}\nv_and_b32 {v(acc+2*i+1)}, 0xffff0000, {v(tmp+i)}")
    for i in range(0,16,2): A(f"v_pk_fma_f32 {v(acc+i,2)}, {v(acc+i,2)}, {v(r1,2)}, {v(mu,2)} op_sel_hi:[1,0,0]")
    V.free(mu,r1)
    def signal(soff_expr,pre=None,atomic=False):
        lb=A.lab('Lsig')
        A(f"s_cmp_lg_u32 s{sW}, 0\ns_cbranch_scc1 {lb}"); A.cond=1
        if pre: pre()
        A(soff_expr)
        A(f"buffer_{'atomic_add' if atomic else 'store_dword'} {v(vOne)}, {v(vSigA)}, {srd(sWS)}, s{sT} offen sc1")
        A.cond=0; A(lb+":")
    def spin(addr,sr,soff,target):
        lp=A.lab('Lp'); ld=A.lab('Ld')
        A(f"s_mov_b32 s{sCNT}, 0\n{lp}:\nbuffer_load_dword {v(dmy)}, {v(addr)}, {srd(sr)}, {soff} offen sc1")
        A(f"s_add_u32 s{sCNT}, s{sCNT}, 1\ns_cmp_gt_u32 s{sCNT}, 5000\ns_cbranch_scc1 {ld}\ns_waitcnt vmcnt(0)\nv_cmp_gt_u32 vcc, {target}, {v(dmy)}\ns_cbranch_vccnz {lp}\n{ld}:\ns_waitcnt vmcnt(0)")
    def poll(soff_expr,addr=None,target=1):
        lb=A.lab('Lpoll')
        A(f"s_cmp_lg_u32 s{sW}, 0\ns_cbranch_scc1 {lb}"); A.cond=1
        A(soff_expr); spin(vPoll if addr is None else addr,sWS,f"s{sT}",target)
        A.cond=0; A(lb+":\ns_barrier")
    A.wait('hst'); A("s_waitcnt lgkmcnt(0)\ns_barrier")
    def chk_init():
        A(f"v_mov_b32 {v(t)}, 0"); spin(t,sDBG,0,1)
    signal(f"s_lshl_b32 s{sT}, s{sCD}, 7\ns_lshl_b32 s{sT+1}, s{sJ}, 2\ns_add_u32 s{sT}, s{sT}, s{sT+1}",pre=chk_init)
    stamp('sig1')
    dacc=V.alloc(32,4); ar=V.alloc(32,4); vX2=V.alloc(2); rr=V.alloc(16,4)
    A(f"v_add_u32 {v(vX2)}, {2*XS}, {v(vXA)}\nv_add_u32 {v(vX2+1)}, {2*XS}, {v(vXA+1)}")
    A(f"v_lshlrev_b32 {v(t)}, 4, {v(vQ)}\nv_add_u32 {v(t)}, {R1L}, {v(t)}")
    for T in range(4): A(f"ds_read_b128 {v(rr+4*T,4)}, {v(t)} offset:{64*T}")
    seq=[(ks,T) for ks in range(16) for T in range(4)]
    def rdD(i):
        ks,T=seq[i]; base=(vXA if T<2 else vX2)+ks%2
        return f"ds_read_b128 {v(ar+4*(i%8),4)}, {v(base)} offset:{(T%2)*XS+(ks//2)*2048}"
    for i in range(6): A(rdD(i))
    for i,(ks,T) in enumerate(seq):
        if i+6<64: A(rdD(i+6))
        d=dacc+16*(ks//8)+4*T
        A(f"v_mfma_f32_16x16x32_bf16 {v(d,4)}, {v(ar+4*(i%8),4)}, {v(Wd+4*(ks%8),4)}, {v(d,4) if ks%8 else 0}")
    V.free(Wd,vX2,vXA,vXW)
    A("s_barrier")
    A(f"v_bfe_u32 {v(t)}, v0, 3, 1\nv_lshlrev_b32 {v(t)}, 6, {v(t)}\nv_bfe_u32 {v(t2)}, v0, 4, 1\nv_lshl_add_u32 {v(t)}, {v(t2)}, 5, {v(t)}\nv_and_b32 {v(t2)}, 3, v0\nv_lshl_add_u32 {v(t)}, {v(t2)}, 3, {v(t)}")
    A(f"v_lshl_add_u32 {v(t)}, {v(vRR)}, 7, {v(t)}\nv_lshrrev_b32 {v(t2)}, 5, v0\nv_lshl_add_u32 {v(t)}, {v(t2)}, 9, {v(t)}\nv_add_u32 {v(vTB)}, s{sXA}, {v(t)}\nv_xor_b32 {v(vTB+1)}, 64, {v(vTB)}")
    A(f"s_mul_i32 s{sT}, s{sJ}, 3\ns_add_u32 s{sT}, s{sT}, s{sW}\ns_lshr_b32 s{sT+1}, s{sJ}, 1\ns_add_u32 s{sT+1}, s{sT+1}, 24\ns_cmp_lt_u32 s{sW}, 3\ns_cselect_b32 s{sPAIR}, s{sT}, s{sT+1}")
    A(f"v_and_b32 {v(t)}, 2, {v(vRow8)}\nv_lshlrev_b32 {v(t)}, 1, {v(t)}\nv_xor_b32 {v(t)}, {v(t)}, {v(vSlot)}\nv_lshlrev_b32 {v(vCh)}, 4, {v(t)}")
    A(f"v_mul_u32_u24 {v(t)}, 3584, {v(vRow8)}\nv_add_u32 {v(vD)}, {v(t)}, {v(vCh)}")
    for i in range(1,4): A(f"v_add_u32 {v(vD+i)}, {i*(8*3584-1024)}, {v(vD)}")
    sW3O=61
    A(f"s_lshl_b32 s{sW3O}, s{sPAIR}, 7")
    def dmaW3(b):
        r=L(); r(f"s_add_u32 m0, s{sXA}, {(b%5)*4096}\ns_add_u32 s{sSO}, s{sW3O}, {b*32*3584}")
        for i in range(4): r(f"buffer_load_dwordx4 {v(vD+i)}, {srd(sW3)}, s{sSO} offen offset:{i*1024} lds",tag=f'w3_{b}')
        return r
    for b in range(5): A(dmaW3(b))
    sg=V.alloc(2); A(f"v_mov_b32 {v(sg)}, {v(vSig)}")
    for i in range(0,16,2): A(f"v_pk_fma_f32 {v(dacc+i,2)}, {v(dacc+16+i,2)}, {v(sg,2)}, {v(dacc+i,2)} op_sel_hi:[1,0,1]")
    for i in range(0,16,2): A(f"v_pk_mul_f32 {v(dacc+i,2)}, {v(dacc+i,2)}, {v(rr+i,2)}")
    for i in range(0,16,2): A(f"v_cvt_pk_bf16_f32 {v(ar+i//2)}, {v(dacc+i)}, {v(dacc+i+1)}")
    for i in range(8): A(f"v_xor_b32_dpp {v(ar+8+i)}, {v(ar+i)}, {v(vSgn)} quad_perm:[1,0,3,2] row_mask:0xf bank_mask:0xf")
    V.free(sg,vSig,vSgn)
    for p in range(2):
        for tau in range(2):
            A(f"v_mfma_f32_16x16x32_bf16 {v(rr+8*p+4*tau,4)}, {v(ar+4*p,4)}, {v(F32+4*tau,4)}, 0")
    for p in range(2):
        for tau in range(2):
            A(f"v_mfma_f32_16x16x32_bf16 {v(rr+8*p+4*tau,4)}, {v(ar+8+4*p,4)}, {v(F32+8+4*tau,4)}, {v(rr+8*p+4*tau,4)}")
    A(f"s_lshl_b32 s{sT}, s{sW}, 6\ns_add_u32 s{sT}, s{sT}, {YT}\nv_mul_u32_u24 {v(t)}, 272, {v(vN)}\nv_lshl_add_u32 {v(t)}, {v(vQ)}, 4, {v(t)}\nv_add_u32 {v(t)}, s{sT}, {v(t)}")
    for tau in range(2):
        for r_ in range(4): A(f"v_cvt_pk_bf16_f32 {v(ar+16+4*tau+r_)}, {v(rr+4*tau+r_)}, {v(rr+8+4*tau+r_)}")
        A(f"ds_write_b128 {v(t)}, {v(ar+16+4*tau,4)} offset:{tau*16*272}")
    A(f"s_mul_i32 s{sT}, s{sW}, {8*272}\ns_add_u32 s{sT}, s{sT}, {YT}\nv_mul_u32_u24 {v(t)}, 272, {v(vQ)}\nv_lshl_add_u32 {v(t)}, {v(vN)}, 4, {v(t)}\nv_add_u32 {v(t)}, s{sT}, {v(t)}")
    A(f"v_lshlrev_b32 {v(t2)}, 16, {v(vQ)}\nv_lshl_add_u32 {v(t2)}, {v(vN)}, 4, {v(t2)}")
    A(f"s_lshl_b32 s{sT}, s{sW}, 19\ns_lshl_b32 s{sT+1}, s{sC}, 11\ns_add_u32 s{sT}, s{sT}, s{sT+1}\ns_lshl_b32 s{sT+1}, s{sJ}, 8\ns_add_u32 s{sT}, s{sT}, s{sT+1}\ns_add_u32 s{sT}, s{sT}, {YB}\ns_add_u32 s{sT+1}, s{sT}, {4*65536}")
    A("s_waitcnt lgkmcnt(0)\ns_barrier")
    for i in range(2): A(f"ds_read_b128 {v(ar+4*i,4)}, {v(t)} offset:{i*4*272}")
    for i in range(2): A(f"buffer_store_dwordx4 {v(ar+4*i,4)}, {v(t2)}, {srd(sWS)}, s{sT+i} offen sc1",tag='yst')
    V.free(dacc,ar,rr,F32)
    stamp('dft')
    A(f"v_lshlrev_b32 {v(t)}, 9, {v(vQ)}")
    for T in range(4): A(f"v_sub_u32 {v(vTA+T)}, {v(vTA+T)}, {v(t)}")
    A.wait('w2')
    poll(f"s_lshl_b32 s{sT}, s{sC}, 7")
    stamp('poll1')
    hb=V.alloc(64,4); ar=V.alloc(32,4)
    sCB=62
    A(f"s_lshl_b32 s{sCB}, s{sC}, 16\ns_lshl_b32 s{sT}, s{sW}, 14\ns_add_u32 s{sCB}, s{sCB}, s{sT}")
    for ks in range(16):
        if ks%4==0: A(f"s_add_u32 s{sSO}, s{sCB}, {HB+ks*1024}")
        A(f"buffer_load_dwordx4 {v(hb+4*ks,4)}, {v(vL16)}, {srd(sWS)}, s{sSO} offen offset:{(ks%4)*1024} sc1")
    def rdA2(i):
        ks,T=seq[i]; d=ar+4*(i%8)
        return f"ds_read_b64_tr_b16 {v(d,2)}, {v(vTA+T)} offset:{ks*4096}\nds_read_b64_tr_b16 {v(d+2,2)}, {v(vTA+T)} offset:{ks*4096+2048}"
    for i in range(6): A(rdA2(i))
    for i,(ks,T) in enumerate(seq):
        if i+6<64: A(rdA2(i+6))
        A(f"v_mfma_f32_16x16x32_bf16 {v(acc+4*T,4)}, {v(ar+4*(i%8),4)}, {v(hb+4*ks,4)}, {v(acc+4*T,4)}")
    V.free(hb,ar,vTA)
    stamp('g2')
    SS=V.alloc(2)
    A(f"v_mov_b32 {v(SS)}, 0\nv_mov_b32 {v(SS+1)}, 0\ns_lshl_b32 s{sT}, s{sJ}, 11\ns_add_u32 s{sT}, s{sT}, s{sCB}\ns_add_u32 s{sT}, s{sT}, {X1B}")
    for i in range(8): A(f"v_cvt_pk_bf16_f32 {v(pk+i)}, {v(acc+2*i)}, {v(acc+2*i+1)}")
    for pi in range(2): A(f"buffer_store_dwordx4 {v(pk+4*pi,4)}, {v(vL16)}, {srd(sWS)}, s{sT} offen offset:{pi*1024} sc1")
    for i in range(8): A(f"v_dot2c_f32_bf16 {v(SS)}, {v(ones)}, {v(pk+i)}\nv_dot2c_f32_bf16 {v(SS+1)}, {v(pk+i)}, {v(pk+i)}")
    allred(SS,t); allred(SS+1,t2)
    A(f"v_lshlrev_b32 {v(t)}, 3, v0\nv_mov_b32 {v(t2)}, {OOB}\nv_cmp_gt_u32 vcc, 16, v0\nv_cndmask_b32 {v(t)}, {v(t2)}, {v(t)}, vcc")
    A(f"s_lshl_b32 s{sT}, s{sC}, 12\ns_lshl_b32 s{sT+1}, s{sJ}, 9\ns_add_u32 s{sT}, s{sT}, s{sT+1}\ns_lshl_b32 s{sT+1}, s{sW}, 7\ns_add_u32 s{sT}, s{sT}, s{sT+1}\ns_add_u32 s{sT}, s{sT}, {STB}")
    A(f"buffer_store_dwordx2 {v(SS,2)}, {v(t)}, {srd(sWS)}, s{sT} offen sc1",tag='x1st')
    V.free(acc,SS)
    stamp('x1st')
    sel=V.alloc(4,4); csx=V.alloc(8,4)
    A(f"v_bfe_u32 {v(t)}, v0, 2, 1\nv_bfe_u32 {v(t2)}, v0, 4, 1\nv_cmp_eq_u32 vcc, {v(t)}, {v(t2)}\nv_cndmask_b32 {v(sel)}, 0, {v(ones)}, vcc")
    for i in range(1,4): A(f"v_mov_b32 {v(sel+i)}, {v(sel)}")
    def trW3(b):
        r=L(); r.wait(f'w3_{b}')
        for f in range(2):
            for u in range(2):
                for hf in range(2):
                    r(f"ds_read_b64_tr_b16 {a(f*128+(2*b+u)*4+2*hf,2)}, {v(vTB+f)} offset:{(b%5)*4096+hf*2048+u*1024}",tag=f'w3r_{b}')
        return r
    def csW3(b):
        r=L()
        for u in range(2):
            for f in range(2):
                r(f"v_mfma_f32_16x16x32_bf16 {v(csx+4*f,4)}, {v(sel,4)}, {a(f*128+(2*b+u)*4,4)}, {v(csx+4*f,4) if (b or u) else 0}")
        return r
    for b in range(5): A(trW3(b)); A(csW3(b))
    A.wait('x1st'); A("s_barrier")
    signal(f"s_lshl_b32 s{sT}, s{sC}, 7\ns_lshl_b32 s{sT+1}, s{sJ}, 2\ns_add_u32 s{sT}, s{sT}, s{sT+1}\ns_add_u32 s{sT}, s{sT}, 32")
    signal(f"s_lshl_b32 s{sT}, s{sJ}, 7\ns_add_u32 s{sT}, s{sT}, {FYO}",atomic=True)
    stamp('sig2')
    for b in range(5,10): A(dmaW3(b))
    for b in range(5,16):
        A(trW3(b)); A(csW3(b))
        if b+5<16: A(dmaW3(b+5))
    V.free(sel,ones,vRR)
    for f in range(2):
        A(f"v_cvt_pk_bf16_f32 {v(t)}, {v(csx+4*f)}, {v(csx+4*f)}\nv_and_b32 {v(t)}, 0xffff0000, {v(t)}\nv_sub_f32 {v(t2)}, {v(csx+4*f)}, {v(t)}\nv_cvt_pk_bf16_f32 {v(Ax+2*f)}, {v(t)}, {v(t2)}\nv_mov_b32 {v(Ax+2*f+1)}, 0")
    for i in range(6): A(f"v_mov_b32 {v(Bx+i)}, 0")
    V.free(csx)
    A(f"v_lshl_add_u32 {v(vD)}, {v(vRow8)}, 10, {v(vCh)}")
    for i in range(1,4): A(f"v_add_u32 {v(vD+i)}, {i*7168}, {v(vD)}")
    V.free(vCh)
    sW4O,sW4P=61,63
    A(f"s_mul_i32 s{sW4O}, s{sW}, {384*1024}\ns_lshl_b32 s{sT}, s{sJ}, 7\ns_add_u32 s{sW4O}, s{sW4O}, s{sT}\ns_lshl_b32 s{sW4P}, s{sW}, 16\ns_add_u32 s{sW4P}, s{sW4P}, s{sT}")
    def dmaW4(b):
        r=L(); r(f"s_add_u32 m0, s{sXA}, {(b%5)*4096}")
        r(f"s_add_u32 s{sSO}, s{sW4O}, {b*32768}" if b<12 else f"s_add_u32 s{sSO}, s{sW4P}, {1536*1024+(b-12)*32768}")
        for i in range(4): r(f"buffer_load_dwordx4 {v(vD+i)}, {srd(sW4)}, s{sSO} offen offset:{i*1024} lds",tag=f'w4_{b}')
        return r
    NV4=7
    w4v=V.alloc(16*NV4,4)
    def w4reg(b,u,f): return (w4v+16*b if b<NV4 else 256+16*(b-NV4))+8*u+4*f
    def trW4(b):
        r=L(); r.wait(f'w4_{b}')
        for u in range(2):
            for f in range(2):
                for hf in range(2):
                    r(f"ds_read_b64_tr_b16 {R(w4reg(b,u,f)+2*hf,2)}, {v(vTB+f)} offset:{(b%5)*4096+u*2048+hf*1024}",tag=f'w4r_{b}')
        return r
    stamp('w3rd')
    poll(f"s_lshl_b32 s{sT}, s{sC}, 7\ns_add_u32 s{sT}, s{sT}, 32")
    stamp('poll2')
    A(f"s_lshl_b32 s{sT}, s{sW}, 10\ns_add_u32 m0, s{sT}, {STL}\ns_lshl_b32 s{sT+1}, s{sC}, 12\ns_add_u32 s{sT}, s{sT}, s{sT+1}\ns_add_u32 s{sT}, s{sT}, {STB}")
    A(f"buffer_load_dwordx4 {v(vL16)}, {srd(sWS)}, s{sT} offen sc1 lds")
    A(f"s_and_b32 s{sT}, s{sW}, 1\ns_lshl_b32 s{sT}, s{sT}, 14\ns_lshr_b32 s{sT+1}, s{sW}, 1\ns_lshl_b32 s{sT+1}, s{sT+1}, 12\ns_add_u32 s{sT}, s{sT}, s{sT+1}\ns_lshl_b32 s{sT+1}, s{sC}, 16\ns_add_u32 s{sT+1}, s{sT+1}, s{sT}")
    for P in range(2):
        for kh in range(2):
            o=P*32768+kh*8192
            A(f"s_add_u32 m0, s{sT}, {WB+o}\ns_add_u32 s{sSO}, s{sT+1}, {X1B+o}")
            for i in range(4): A(f"buffer_load_dwordx4 {v(vL16)}, {srd(sWS)}, s{sSO} offen offset:{i*1024} sc1 lds",tag=f'x1_{P}{kh}')
    for b in range(5): A(dmaW4(b))
    vBA=V.alloc(1); br=V.alloc(16,4); acc=V.alloc(64,4); KK=V.alloc(6); muP=V.alloc(2); rP=V.alloc(2)
    A(f"v_bfe_u32 {v(t)}, v0, 4, 1\nv_lshlrev_b32 {v(t)}, 14, {v(t)}\nv_lshrrev_b32 {v(t2)}, 5, v0\nv_lshl_add_u32 {v(t)}, {v(t2)}, 8, {v(t)}\nv_lshl_add_u32 {v(t)}, {v(vN)}, 4, {v(t)}\nv_add_u32 {v(vBA)}, {WB}, {v(t)}")
    sH3=58
    A(f"s_mul_i32 s{sH3}, s{sC}, 229376\ns_add_u32 s{sH3}, s{sH3}, {H3B}\ns_lshl_b32 s{sT}, s{sPAIR}, 12\ns_add_u32 s{sHS}, s{sH3}, s{sT}")
    def g3(P):
        groups=[]
        def rdB(k): return f"ds_read_b128 {v(br+4*(k%4),4)}, {v(vBA)} offset:{P*32768+(k//2)*1024+(k%2)*512}"
        pre=L()
        if P==0: pre.wait('x1_00'); pre("s_barrier")
        for k in range(3): pre(rdB(k))
        for k in range(32):
            for f in range(2):
                g=L()
                if f==0 and k+3<32:
                    if P==0 and k+3==16: g.wait('x1_01'); g("s_barrier")
                    g(rdB(k+3))
                if P==0 and k==31 and f==0: g.wait('x1_11'); g("s_barrier")
                d=acc+32*P+16*f
                g(f"v_mfma_f32_32x32x16_bf16 {v(d,16)}, {a(f*128+k*4,4)}, {v(br+4*(k%4),4)}, {v(d,16) if k else 0}")
                groups.append(g)
        for f in range(2):
            d=acc+32*P+16*f
            groups.append(L()(f"v_mfma_f32_32x32x16_bf16 {v(d,16)}, {v(Ax,4)}, {v(Bx+2-2*f,4)}, {v(d,16)}"))
        return pre,groups
    st=L()
    st(f"v_lshlrev_b32 {v(t)}, 3, v0\nv_add_u32 {v(t)}, {STL}, {v(t)}")
    for half in range(2):
        for m in range(4): st(f"ds_read_b64 {v(tmp+2*m,2)}, {v(t)} offset:{(4*half+m)*512}")
        st(f"v_pk_add_f32 {v(tmp,2)}, {v(tmp,2)}, {v(tmp+2,2)}\nv_pk_add_f32 {v(tmp+4,2)}, {v(tmp+4,2)}, {v(tmp+6,2)}")
        st(f"v_pk_add_f32 {v(muP if half==0 else tmp,2)}, {v(tmp,2)}, {v(tmp+4,2)}")
    st(f"v_pk_add_f32 {v(tmp,2)}, {v(tmp,2)}, {v(muP,2)}")
    st(f"v_mul_f32 {v(muP)}, {fb(-1/512)}, {v(tmp)}\nv_mul_f32 {v(t)}, {v(muP)}, {v(muP)}\nv_fma_f32 {v(t)}, {v(tmp+1)}, s60, -{v(t)}\nv_max_f32 {v(t)}, 0, {v(t)}\nv_add_f32 {v(t)}, {fb(1e-5)}, {v(t)}\nv_rsq_f32 {v(rP)}, {v(t)}")
    st(f"v_mov_b32 {v(muP+1)}, {v(muP)}\nv_mov_b32 {v(rP+1)}, {v(rP)}\nv_permlane32_swap_b32 {v(muP)}, {v(muP+1)}\nv_permlane32_swap_b32 {v(rP)}, {v(rP+1)}")
    def setB(P):
        r=L()
        r(f"v_cvt_pk_bf16_f32 {v(t)}, {v(muP+P)}, {v(muP+P)}\nv_and_b32 {v(t2)}, 0xffff0000, {v(t)}\nv_sub_f32 {v(t2)}, {v(muP+P)}, {v(t2)}\nv_cvt_pk_bf16_f32 {v(t2)}, {v(t2)}, {v(t2)}")
        r(f"v_cmp_gt_u32 vcc, 32, v0\nv_cndmask_b32 {v(Bx+2)}, {v(t2)}, {v(t)}, vcc")
        return r
    def epi3(P):
        r=L(); gelu_consts(rP+P,KK,t3,r)
        r(f"s_add_u32 s{sSO2}, s{sHS}, {P*114688}")
        for f in range(2):
            for u in range(2):
                r(gelu(acc+32*P+16*f+8*u,8,KK,tmp,pk+4*u))
                r(f"buffer_store_dwordx4 {v(pk+4*u,4)}, {v(vL16)}, {srd(sWS)}, s{sSO2} offen offset:{f*2048+u*1024} sc1",tag=f'h3st{P}')
        return r
    pre,gr=g3(0)
    fill=L(); fill(st); fill(setB(0))
    for b in range(5): fill(trW4(b)); fill.wait(f'w4r_{b}'); fill(dmaW4(b+5))
    A(pre); A(interleave(gr[:-2],fill,4,start=2)); A(gr[-2]); A(gr[-1])
    stamp('g3a')
    pre,gr=g3(1)
    fill=L(); fill(epi3(0)); fill(setB(1))
    A(pre); A(interleave(gr[:-2],fill,5,start=1)); A(gr[-2]); A(gr[-1])
    A.wait('h3st0'); A("s_barrier")
    signal(f"s_lshl_b32 s{sT}, s{sC}, 7\ns_lshl_b32 s{sT+1}, s{sJ}, 2\ns_add_u32 s{sT}, s{sT}, s{sT+1}\ns_add_u32 s{sT}, s{sT}, 64")
    stamp('g3b')
    A(epi3(1))
    V.free(vBA,br,KK,muP,rP,Ax,Bx)
    x1v=V.alloc(8,4); xv=V.alloc(8,4); vOA=V.alloc(1)
    A(f"s_lshr_b32 s{sT}, s{sW}, 1\ns_lshl_b32 s{sT}, s{sT}, 14\ns_and_b32 s{sT+1}, s{sW}, 1\ns_lshl_b32 s{sT+1}, s{sT+1}, 7\ns_add_u32 s{sT}, s{sT}, s{sT+1}\ns_lshl_b32 s{sT+1}, s{sJ}, 11\ns_add_u32 s{sT}, s{sT}, s{sT+1}\ns_add_u32 s{sT}, s{sT}, {WB}")
    A(f"v_bfe_u32 {v(t)}, v0, 2, 1\nv_lshlrev_b32 {v(t)}, 10, {v(t)}\nv_and_b32 {v(t2)}, 1, v0\nv_lshl_add_u32 {v(t)}, {v(t2)}, 9, {v(t)}\nv_lshl_add_u32 {v(t)}, {v(vRow8)}, 4, {v(t)}\nv_bfe_u32 {v(t2)}, v0, 1, 1\nv_lshl_add_u32 {v(t)}, {v(t2)}, 3, {v(t)}\nv_add_u32 {v(t)}, s{sT}, {v(t)}")
    for P in range(2):
        for q_ in range(2): A(f"ds_read_b64 {v(x1v+4*P+2*q_,2)}, {v(t)} offset:{P*32768+q_*256}")
    for b in range(5,10):
        A(trW4(b))
        if b+5<14: A.wait(f'w4r_{b}'); A(dmaW4(b+5))
    A.wait('h3st1'); A("s_waitcnt lgkmcnt(0)\ns_barrier")
    signal(f"s_lshl_b32 s{sT}, s{sC}, 7\ns_lshl_b32 s{sT+1}, s{sJ}, 2\ns_add_u32 s{sT}, s{sT}, s{sT+1}\ns_add_u32 s{sT}, s{sT}, 96")
    stamp('sig3b')
    A(f"v_lshlrev_b32 {v(t3)}, 7, {v(vSlot)}")
    poll(f"s_mov_b32 s{sT}, {FYO}",addr=t3,target=32)
    sOO=63
    A(f"v_lshlrev_b32 {v(vOA)}, 16, {v(vRow8)}\nv_lshl_add_u32 {v(vOA)}, {v(vSlot)}, 4, {v(vOA)}")
    A(f"s_lshl_b32 s{sOO}, s{sW}, 19\ns_lshl_b32 s{sT}, s{sC}, 10\ns_add_u32 s{sOO}, s{sOO}, s{sT}\ns_lshl_b32 s{sT}, s{sJ}, 7\ns_add_u32 s{sOO}, s{sOO}, s{sT}\ns_add_u32 s{sT}, s{sOO}, 32768")
    A(f"buffer_load_dwordx4 {v(xv,4)}, {v(vOA)}, {srd(sX)}, s{sOO} offen\nbuffer_load_dwordx4 {v(xv+4,4)}, {v(vOA)}, {srd(sX)}, s{sT} offen")
    YA=256+224
    A(f"s_and_b32 s{sT}, s{sW}, 1\ns_lshl_b32 s{sT}, s{sT}, 5\ns_lshl_b32 s{sT+1}, s{sJ}, 6\ns_add_u32 s{sT}, s{sT}, s{sT+1}")
    A(f"v_and_b32 {v(t)}, 31, v0\nv_add_u32 {v(t)}, s{sT}, {v(t)}")
    A(f"s_cmp_ge_u32 s{sJ}, 4\ns_cselect_b32 s{sT+2}, -1, 1")
    A(f"v_mul_i32_i24 {v(t2)}, s{sT+2}, {v(t)}\nv_and_b32 {v(t2)}, 255, {v(t2)}\nv_lshlrev_b32 {v(t2)}, 3, {v(t2)}\nv_lshrrev_b32 {v(t3)}, 5, v0\nv_lshl_add_u32 {v(t2)}, {v(t3)}, 12, {v(t2)}")
    A(f"v_cmp_eq_u32 vcc, 0, {v(t)}\nv_mov_b32 {v(t)}, {OOB}\nv_cndmask_b32 {v(t2)}, {v(t2)}, {v(t)}, vcc")
    A(f"s_mul_i32 s{sT}, s{sC}, s{sT+2}\ns_and_b32 s{sT}, s{sT}, 31\ns_lshl_b32 s{sT}, s{sT}, 16\ns_add_u32 s{sSO}, s{sT}, {YB}")
    for ks in range(8):
        for i in range(2): A(f"buffer_load_dwordx2 {R(YA+4*ks+2*i,2)}, {v(t2)}, {srd(sWS)}, s{sSO} offen offset:{i*2048} sc1")
        if ks<7: A(f"s_add_u32 s{sSO}, s{sSO}, 8192")
    ang=V.alloc(4); step=V.alloc(2); wf=V.alloc(8,4)
    A(f"s_lshr_b32 s{sT}, s{sW}, 1\ns_lshl_b32 s{sT}, s{sT}, 5\ns_add_u32 s{sT}, s{sT}, s{sC}\nv_and_b32 {v(t)}, 31, v0\nv_lshl_add_u32 {v(t)}, {v(t)}, 6, s{sT}\nv_mul_i32_i24 {v(t)}, s{sT+2}, {v(t)}")
    A(f"v_cvt_f32_i32 {v(t)}, {v(t)}\nv_mul_f32 {v(t)}, {fb(1/2048)}, {v(t)}\nv_cvt_f32_u32 {v(t3)}, {v(t3)}\nv_mul_f32 {v(t3)}, 2.0, {v(t3)}\nv_mul_f32 {v(ang)}, {v(t3)}, {v(t)}")
    A(f"v_fmamk_f32 {v(ang+1)}, {v(t)}, {fb(32)}, {v(ang)}\nv_add_f32 {v(ang+2)}, {v(ang)}, {v(t)}\nv_add_f32 {v(ang+3)}, {v(ang+1)}, {v(t)}\nv_mul_f32 {v(step)}, 4.0, {v(t)}")
    for ks in range(8):
        for i in range(4): A(f"v_cos_f32 {v(tmp+i)}, {v(ang+i)}\nv_sin_f32 {v(tmp+4+i)}, {v(ang+i)}")
        if ks<7:
            for i in range(0,4,2): A(f"v_pk_add_f32 {v(ang+i,2)}, {v(ang+i,2)}, {v(step,2)} op_sel_hi:[1,0]")
        wq=wf+4*(ks%2)
        A(f"v_cvt_pk_bf16_f32 {v(wq)}, {v(tmp)}, {v(tmp+1)}\nv_cvt_pk_bf16_f32 {v(wq+1)}, {v(tmp+4)}, {v(tmp+5)}\nv_cvt_pk_bf16_f32 {v(wq+2)}, {v(tmp+2)}, {v(tmp+3)}\nv_cvt_pk_bf16_f32 {v(wq+3)}, {v(tmp+6)}, {v(tmp+7)}")
        A(f"v_mfma_f32_32x32x16_bf16 {v(acc,16)}, {R(YA+4*ks,4)}, {v(wq,4)}, {v(acc,16) if ks else 0}")
    V.free(ang,step,wf)
    vPW=V.alloc(1); vPR=V.alloc(1)
    A(f"v_and_b32 {v(t)}, 31, v0\nv_mul_u32_u24 {v(t)}, 272, {v(t)}\nv_lshrrev_b32 {v(t2)}, 5, v0\nv_lshl_add_u32 {v(vPW)}, {v(t2)}, 4, {v(t)}")
    A(f"s_lshr_b32 s{sT}, s{sW}, 1\ns_mul_i32 s{sT}, s{sT}, {32*272}\ns_and_b32 s{sT+1}, s{sW}, 1\ns_lshl_b32 s{sT+1}, s{sT+1}, 7\ns_add_u32 s{sT}, s{sT}, s{sT+1}\ns_add_u32 s{sT}, s{sT}, {SBL}\nv_add_u32 {v(t)}, s{sT}, {v(vPW)}")
    for rg in range(4): A(f"ds_write_b128 {v(t)}, {v(acc+4*rg,4)} offset:{rg*32}")
    A(f"s_mul_i32 s{sT}, s{sW}, 8704\nv_add_u32 {v(vPW)}, s{sT}, {v(vPW)}")
    A(f"s_mul_i32 s{sT}, s{sW}, {8*272}\nv_mul_u32_u24 {v(t)}, 272, {v(vRow8)}\nv_lshl_add_u32 {v(t)}, {v(vSlot)}, 5, {v(t)}\nv_add_u32 {v(vPR)}, s{sT}, {v(t)}")
    for b in range(10,14): A(trW4(b))
    stamp('seq2')
    HA=256+112
    def ldH(P):
        r=L()
        r(f"s_mul_i32 s{sT}, s{sW}, {12*2048}\ns_add_u32 s{sT}, s{sT}, s{sH3}\ns_lshl_b32 s{sT+1}, s{sW}, 12\ns_add_u32 s{sT+1}, s{sT+1}, s{sH3}")
        for k in range(28):
            if k%4==0: r(f"s_add_u32 s{sSO}, s{sT}, {P*114688+k*1024}" if k<24 else f"s_add_u32 s{sSO}, s{sT+1}, {P*114688+48*2048}")
            r(f"buffer_load_dwordx4 {R(HA+4*k,4)}, {v(vL16)}, {srd(sWS)}, s{sSO} offen offset:{(k%4)*1024} sc1")
        return r
    def g4(P):
        gr=[]
        for k in range(28):
            for f in range(2):
                d=acc+32*P+16*f
                gr.append(L()(f"v_mfma_f32_32x32x16_bf16 {v(d,16)}, {R(w4reg(k//2,k%2,f),4)}, {R(HA+4*k,4)}, {v(d,16) if k else 0}"))
        return gr
    def wrP(P):
        r=L(); r(f"v_add_u32 {v(t)}, {PBA if P==0 else PBB}, {v(vPW)}")
        for f in range(2):
            for rg in range(4): r(f"ds_write_b128 {v(t)}, {v(acc+32*P+16*f+4*rg,4)} offset:{f*128+rg*32}")
        r("s_waitcnt lgkmcnt(0)\ns_barrier")
        return r
    def epi4(P):
        r=L(); e=acc+32*P
        r(f"v_add_u32 {v(t)}, {PBA if P==0 else PBB}, {v(vPR)}\nv_add_u32 {v(t2)}, {SBL+P*32*272}, {v(vPR)}")
        for src in range(4):
            for i in range(2): r(f"ds_read_b128 {v(e+8*src+4*i,4)}, {v(t)} offset:{src*8704+16*i}")
        for i in range(2): r(f"ds_read_b128 {v(pk+4*i,4)}, {v(t2)} offset:{16*i}")
        for i in range(4): r(f"v_lshlrev_b32 {v(tmp+2*i)}, 16, {v(x1v+4*P+i)}\nv_and_b32 {v(tmp+2*i+1)}, 0xffff0000, {v(x1v+4*P+i)}")
        for src in range(4):
            for i in range(0,8,2): r(f"v_pk_add_f32 {v(tmp+i,2)}, {v(tmp+i,2)}, {v(e+8*src+i,2)}")
        for i in range(8): r(f"v_mul_f32 {v(e+i)}, {fb(-math.log2(math.e))}, {v(tmp+i)}")
        for i in range(8): r(f"v_exp_f32 {v(e+i)}, {v(e+i)}")
        for i in range(0,8,2): r(f"v_pk_mul_f32 {v(tmp+i,2)}, {v(tmp+i,2)}, {v(pk+i,2)}")
        for i in range(0,8,2): r(f"v_pk_add_f32 {v(e+i,2)}, {v(e+i,2)}, 1.0 op_sel_hi:[1,0]")
        for i in range(8): r(f"v_rcp_f32 {v(e+i)}, {v(e+i)}")
        for i in range(4): r(f"v_lshlrev_b32 {v(e+8+2*i)}, 16, {v(xv+4*P+i)}\nv_and_b32 {v(e+8+2*i+1)}, 0xffff0000, {v(xv+4*P+i)}")
        for i in range(0,8,2): r(f"v_pk_fma_f32 {v(tmp+i,2)}, {v(tmp+i,2)}, {v(e+i,2)}, {v(e+8+i,2)}")
        for i in range(4): r(f"v_cvt_pk_bf16_f32 {v(e+16+i)}, {v(tmp+2*i)}, {v(tmp+2*i+1)}")
        r(f"s_add_u32 s{sSO2}, s{sOO}, {P*32768}\nbuffer_store_dwordx4 {v(e+16,4)}, {v(vOA)}, {srd(sOUT)}, s{sSO2} offen")
        return r
    poll(f"s_lshl_b32 s{sT}, s{sC}, 7\ns_add_u32 s{sT}, s{sT}, 64")
    A(ldH(0))
    for g in g4(0): A(g)
    poll(f"s_lshl_b32 s{sT}, s{sC}, 7\ns_add_u32 s{sT}, s{sT}, 96")
    A(ldH(1))
    A(wrP(0)); A(epi4(0))
    for g in g4(1): A(g)
    stamp('g4')
    A(wrP(1)); A(epi4(1))
    if stamps:
        A("s_waitcnt vmcnt(0)");
        A(f"s_memrealtime s[{sT+1}:{sT+2}]\ns_waitcnt lgkmcnt(0)\ns_lshl_b32 s{sT}, s{sT+14}, 7\ns_add_u32 s{sT}, s{sT}, {DBGB}")
        gen.names.append('end')
        for i in range(nst[0]+1):
            A(f"v_mov_b32 {v(t)}, s{64+2*i if i<nst[0] else sT+1}\nbuffer_store_dword {v(t)}, {v(vSigA)}, {srd(sWS)}, s{sT} offen offset:{4*i}")
    A("Lend:\ns_endpgm")
    body=A.finish()
    gen.info=dict(nins=A.nins,nops=A.nops,peak=V.peak)
    hdr=open('recurrent_scan__spectral_fnet__mixer_s_mlp__prompt.s.ref').read().split('; Override launch')[0].rstrip() if opt.get('hdr',1) else ''
    return file_text([(KNAME,256,256,LDSN,body,512,256)],hdr)
if __name__=='__main__':
    out=sys.argv[1] if len(sys.argv)>1 else 'k.s'
    open(out,'w').write(gen(stamps='-s' in sys.argv)); print(gen.info)
```

```python
import sys, struct, math
from asmlib import *
KNAME='recurrent_scan__spectral_fnet__mixer_s_mlp__prompt_kernel'
def fb(x): return '0x%08x'%struct.unpack('<I',struct.pack('<f',x))[0]
FLG=0; FYO=4096; HB=0x100000; X1B=0x300000; STB=0x500000; YB=0x600000; H3B=0x800000; DBGB=0x1000000; WSN=0x2000000
OOB=0x40000000
XB=0; XS=20480; WB=81920; SP=147456; STL=SP; YT=SP+4096; R1L=SP+12800
PBA=WB; SBL=WB+34816; PBB=XB
LDSN=163840
sX,sW1,sW2,sW3,sW4,sOUT,sWS,sDBG=4,8,12,16,20,24,28,32
sC,sJ,sW,sPAIR,sCNT=36,37,38,39,40
sT=41
sSO,sSO2=56,57
C1=-2*math.sqrt(2/math.pi)*math.log2(math.e); C2=C1*0.044715
def srd(i): return s(i,4)
def gen(stamps=False,opt=None):
    opt=opt or {}
    A=Asm(); V=RA(1,256)
    nst=[0]
    def stamp(name=''):
        if stamps and name not in opt.get('nostamp',['issued','x1st']):
            A(f"s_memrealtime s[{64+2*nst[0]}:{65+2*nst[0]}]"); nst[0]+=1; assert nst[0]<=18
            gen.names.append(name)
    gen.names=[]
    stamp('start')
    A("s_cmp_ge_u32 s2, 256\ns_cbranch_scc1 Lend")
    for r,o in ((sW1,48),(sX,0),(sWS,96),(sW2,56),(sW3,64),(sW4,72),(sOUT,80),(sDBG,88)):
        A(f"s_load_dwordx2 {s(r,2)}, s[0:1], {o}")
    dmy=V.alloc(1); t0=V.alloc(2)
    tmp=V.alloc(8,4); pk=V.alloc(8,4); ones=V.alloc(4,4); Ax=V.alloc(4,4); Bx=V.alloc(6,2); vTB=V.alloc(2)
    vPoll=V.alloc(1); vSigA=V.alloc(1); vOne=V.alloc(1); vCh=V.alloc(1)
    A(f"s_getpc_b64 s[{sT+1}:{sT+2}]\nLpc:")
    A(f"v_lshlrev_b32 {v(t0)}, 7, v0\nv_min_u32 {v(t0)}, Lend-Lpc, {v(t0)}\nv_mov_b32 {v(t0+1)}, 0")
    A(f"v_lshl_add_u64 {v(t0,2)}, {v(t0,2)}, 0, s[{sT+1}:{sT+2}]")
    A(f"global_load_dword {v(dmy)}, {v(t0,2)}, off")
    V.free(t0)
    A(f"s_and_b32 s{sT}, s2, 7\ns_lshr_b32 s{sT+1}, s2, 3\ns_lshl_b32 s{sC}, s{sT}, 2\ns_lshr_b32 s{sT+2}, s{sT+1}, 3\ns_add_u32 s{sC}, s{sC}, s{sT+2}\ns_and_b32 s{sJ}, s{sT+1}, 7")
    t=V.alloc(1); t2=V.alloc(1); t3=V.alloc(1)
    A(f"v_lshrrev_b32 {v(t)}, 6, v0\nv_and_b32 v0, 63, v0\nv_readfirstlane_b32 s{sW}, {v(t)}")
    for r,n in ((sX,2097152),(sW1,524288),(sW2,524288),(sW3,1835008),(sW4,1835008),(sOUT,2097152),(sWS,WSN),(sDBG,256)):
        A(f"s_mov_b32 s{r+2}, {n}\ns_mov_b32 s{r+3}, 0x20000")
    vL16=V.alloc(1); vRow8=V.alloc(1); vSlot=V.alloc(1); vN=V.alloc(1); vQ=V.alloc(1)
    A(f"v_lshlrev_b32 {v(vL16)}, 4, v0\nv_lshrrev_b32 {v(vRow8)}, 3, v0\nv_and_b32 {v(vSlot)}, 7, v0\nv_and_b32 {v(vN)}, 15, v0\nv_lshrrev_b32 {v(vQ)}, 4, v0")
    vD=V.alloc(4)
    A(f"s_and_b32 s{sT}, s{sW}, 1\ns_lshl_b32 s{sT}, s{sT}, 2")
    A(f"v_and_b32 {v(t)}, 2, {v(vRow8)}\nv_or_b32 {v(t)}, s{sT}, {v(t)}\nv_xor_b32 {v(t)}, {v(t)}, {v(vSlot)}\nv_lshlrev_b32 {v(t)}, 4, {v(t)}\nv_lshl_add_u32 {v(vD)}, {v(vRow8)}, 10, {v(t)}")
    A(f"v_lshrrev_b32 {v(t)}, 1, {v(vRow8)}\nv_xor_b32 {v(t)}, {v(t)}, {v(vSlot)}\nv_lshlrev_b32 {v(t)}, 4, {v(t)}\nv_lshl_add_u32 {v(vD+1)}, {v(vRow8)}, 16, {v(t)}")
    A(f"v_xor_b32 {v(vD+2)}, 64, {v(vD+1)}\nv_add_u32 {v(vD+2)}, {8*65536}, {v(vD+2)}")
    A(f"s_lshl_b32 s{sSO}, s{sW}, 13\ns_lshl_b32 s{sT}, s{sJ}, 7\ns_add_u32 s{sSO}, s{sSO}, s{sT}")
    A(f"s_lshl_b32 s{sT}, s{sW}, 10\ns_add_u32 m0, s{sT}, {WB}")
    A("s_waitcnt lgkmcnt(0)")
    stamp('karg')
    zer=tmp
    A(f"s_lshl_b32 s{sT}, s2, 2\ns_add_u32 s{sT+14}, s{sT}, s{sW}\ns_cmp_lg_u32 s{sT+14}, 3\ns_cbranch_scc1 Lnoinit")
    A.cond=1
    for i in range(4): A(f"v_mov_b32 {v(zer+i)}, 0")
    for i in range(4): A(f"buffer_store_dwordx4 {v(zer,4)}, {v(vL16)}, {srd(sWS)}, 0 offen offset:{i*1024} sc1")
    A(f"s_mov_b32 s{sT}, 4096\nbuffer_store_dwordx4 {v(zer,4)}, {v(vL16)}, {srd(sWS)}, s{sT} offen sc1")
    A.cond=0
    A("Lnoinit:")
    for ks in range(16):
        A(f"buffer_load_dwordx4 {v(vD)}, {srd(sW1)}, s{sSO} offen lds",tag=f'w1_{ks//4}')
        if ks<15: A(f"s_add_u32 s{sSO}, s{sSO}, 32768\ns_add_u32 m0, m0, 4096")
    A(f"s_lshr_b32 s{sT}, s{sW}, 1\ns_lshl_b32 s{sT}, s{sT}, 5\ns_add_u32 s{sT}, s{sT}, s{sC}\ns_and_b32 s{sT+1}, s{sW}, 1\ns_lshl_b32 s{sT+1}, s{sT+1}, 10\ns_add_u32 s{sT+13}, s{sT}, s{sT+1}")
    A(f"s_lshl_b32 s{sSO}, s{sT+13}, 10\ns_mul_i32 s{sT+12}, s{sW}, {XS}\ns_mov_b32 m0, s{sT+12}")
    sROW0=sT+13; sXA=sT+12
    for blk in range(8):
        A(f"buffer_load_dwordx4 {v(vD+1)}, {srd(sX)}, s{sSO} offen lds\ns_add_u32 m0, m0, 1024")
        A(f"buffer_load_dwordx4 {v(vD+2)}, {srd(sX)}, s{sSO} offen lds",tag=f'x_{blk}')
        if blk<7: A(f"s_add_u32 m0, m0, 1024\ns_add_u32 s{sSO}, s{sSO}, 128")
    if opt.get('touch',1):
        A(f"v_lshlrev_b32 {v(t)}, 7, v0\nv_mov_b32 {v(t3)}, {OOB}\nv_cmp_gt_u32 vcc, 14, v0\nv_cndmask_b32 {v(t2)}, {v(t3)}, {v(t)}, vcc")
        A(f"v_cmp_gt_u32 vcc, 4, v0\nv_cndmask_b32 {v(t3)}, {v(t3)}, {v(t)}, vcc")
        A(f"s_mul_i32 s{sT}, s{sT+14}, {4*128}\ns_mul_i32 s{sT+1}, s{sT+14}, {14*128}")
        A(f"buffer_load_dword {v(dmy)}, {v(t3)}, {srd(sW2)}, s{sT} offen\nbuffer_load_dword {v(dmy)}, {v(t2)}, {srd(sW3)}, s{sT+1} offen\nbuffer_load_dword {v(dmy)}, {v(t2)}, {srd(sW4)}, s{sT+1} offen")
    if opt.get('tlb',0):
        sh=opt['tlb']
        A(f"v_lshlrev_b32 {v(t)}, {sh}, v0\nv_mov_b32 {v(t2)}, 0")
        n=max(1,(0x1000000>>sh)//64)
        if sh>18: A(f"v_min_u32 {v(t)}, 0xf00000, {v(t)}")
        for i in range(n):
            if i%4==0 and n>1: pass
        if n==1: A(f"buffer_load_dword {v(dmy)}, {v(t)}, {srd(sWS)}, 0 offen")
        else:
            assert n==4
            A(f"s_lshl_b32 s{sT}, s{sW}, {sh+6}\nbuffer_load_dword {v(dmy)}, {v(t)}, {srd(sWS)}, s{sT} offen")
        A(f"buffer_load_dword {v(dmy)}, {v(t)}, {srd(sOUT)}, 0 offen\nbuffer_load_dword {v(dmy)}, {v(t2)}, {srd(sDBG)}, 0 offen offset:128")
        if sh<20:
            for r in (sW2,sW3,sW4): A(f"buffer_load_dword {v(dmy)}, {v(t)}, {srd(r)}, 0 offen")
    stamp('issued')
    vTA=V.alloc(4)
    vRR=V.alloc(1)
    A(f"v_bfe_u32 {v(vRR)}, v0, 2, 2")
    A(f"v_bfe_u32 {v(t)}, v0, 3, 2\nv_lshlrev_b32 {v(t)}, 5, {v(t)}\nv_and_b32 {v(t2)}, 3, v0\nv_lshl_add_u32 {v(t)}, {v(t2)}, 3, {v(t)}\nv_lshl_add_u32 {v(t)}, {v(vRR)}, 7, {v(t)}")
    A(f"v_lshl_add_u32 {v(t)}, {v(vQ)}, 10, {v(t)}\nv_add_u32 {v(vTA)}, {WB}, {v(t)}")
    for T in range(1,4): A(f"v_xor_b32 {v(vTA+T)}, {32*T}, {v(vTA)}")
    vXA=V.alloc(2)
    A(f"v_lshrrev_b32 {v(t)}, 1, {v(vN)}\nv_xor_b32 {v(t)}, {v(t)}, {v(vQ)}\nv_lshlrev_b32 {v(t)}, 4, {v(t)}\nv_lshl_add_u32 {v(vXA)}, {v(vN)}, 7, {v(t)}\nv_xor_b32 {v(vXA+1)}, 64, {v(vXA)}")
    vXW=V.alloc(2)
    A(f"v_add_u32 {v(vXW)}, s{sXA}, {v(vXA)}\nv_add_u32 {v(vXW+1)}, s{sXA}, {v(vXA+1)}")
    for i in range(4): A(f"v_mov_b32 {v(ones+i)}, 0x3f803f80")
    Wd=V.alloc(32,4); F32=V.alloc(16,4); ang=V.alloc(8); tr=V.alloc(8); vSig=V.alloc(1); vSgn=V.alloc(1); step=V.alloc(2)
    A(f"s_lshl_b32 s{sT}, s{sJ}, 5\ns_lshl_b32 s{sT+1}, s{sW}, 3\ns_add_u32 s{sT}, s{sT}, s{sT+1}")
    A(f"v_lshrrev_b32 {v(t)}, 1, {v(vN)}\nv_add_u32 {v(t)}, s{sT}, {v(t)}\nv_mov_b32 {v(t2)}, 256\nv_cmp_eq_u32 vcc, 0, {v(t)}\nv_cndmask_b32 {v(t)}, {v(t)}, {v(t2)}, vcc")
    A(f"v_and_b32 {v(t2)}, 1, {v(t)}\nv_lshlrev_b32 {v(t2)}, 31, {v(t2)}\nv_or_b32 {v(vSig)}, 1.0, {v(t2)}")
    A(f"v_cvt_f32_u32 {v(t)}, {v(t)}\nv_mul_f32 {v(t)}, {fb(1/512)}, {v(t)}")
    A(f"v_and_b32 {v(t2)}, 1, v0\nv_mul_u32_u24 {v(vSgn)}, 0x8001, {v(t2)}\nv_lshlrev_b32 {v(vSgn)}, 15, {v(vSgn)}")
    A(f"v_mul_u32_u24 {v(vSgn)}, 0x10001, {v(t2)}\nv_lshlrev_b32 {v(vSgn)}, 15, {v(vSgn)}")
    A(f"v_cvt_f32_u32 {v(t2)}, {v(t2)}\nv_mul_f32 {v(t2)}, 0x3e800000, {v(t2)}")
    A(f"v_cvt_f32_u32 {v(t3)}, {v(vQ)}\nv_mul_f32 {v(step)}, 0x41000000, {v(t3)}\nv_fma_f32 {v(ang)}, {v(step)}, {v(t)}, {v(t2)}")
    for jj in range(1,8): A(f"v_add_f32 {v(ang+jj)}, {v(ang+jj-1)}, {v(t)}")
    A(f"v_mul_f32 {v(step)}, 0x42000000, {v(t)}")
    for ks in range(8):
        for jj in range(8): A(f"v_cos_f32 {v(tr+jj)}, {v(ang+jj)}")
        if ks<7:
            for jj in range(0,8,2): A(f"v_pk_add_f32 {v(ang+jj,2)}, {v(ang+jj,2)}, {v(step,2)} op_sel_hi:[1,0]")
        for jj in range(0,8,2): A(f"v_cvt_pk_bf16_f32 {v(Wd+4*ks+jj//2)}, {v(tr+jj)}, {v(tr+jj+1)}")
    for tau in range(2):
        A(f"v_add_u32 {v(t)}, {16*tau}, {v(vN)}\nv_cvt_f32_u32 {v(t)}, {v(t)}\nv_mul_f32 {v(t)}, {fb(1/32)}, {v(t)}\nv_mul_f32 {v(t2)}, 4.0, {v(t3)}\nv_mul_f32 {v(ang)}, {v(t2)}, {v(t)}")
        for jj in range(1,8): A(f"v_fmamk_f32 {v(ang+jj)}, {v(t)}, {fb(16*(jj//4)+jj%4)}, {v(ang)}")
        for fn,o in (('cos',0),('sin',8)):
            for jj in range(8): A(f"v_{fn}_f32 {v(tr+jj)}, {v(ang+jj)}")
            for jj in range(0,8,2): A(f"v_cvt_pk_bf16_f32 {v(F32+o+4*tau+jj//2)}, {v(tr+jj)}, {v(tr+jj+1)}")
    V.free(ang,tr,step)
    vHA=V.alloc(1); vHM=V.alloc(1); sCD=58
    A(f"s_lshr_b32 s{sT}, s{sJ}, 2\ns_add_u32 s{sT}, s{sT}, 1\ns_sub_u32 s{sT+1}, 0, s{sT}\ns_bitcmp1_b32 s{sJ}, 1\ns_cselect_b32 s{sT}, s{sT+1}, s{sT}")
    A(f"s_add_u32 s{sCD}, s{sC}, s{sT}\ns_and_b32 s{sCD}, s{sCD}, 31\ns_add_u32 s{sT}, s{sT}, s{sROW0}")
    A(f"v_lshl_add_u32 {v(t)}, {v(vN)}, 6, s{sT}\nv_cmp_gt_u32 vcc, 0x800, {v(t)}\nv_cndmask_b32 {v(vHM)}, 0, -1, vcc")
    A(f"v_bfe_u32 {v(t2)}, {v(t)}, 5, 1\nv_lshlrev_b32 {v(t2)}, 15, {v(t2)}\nv_bfe_u32 {v(t3)}, {v(t)}, 10, 1\nv_lshl_add_u32 {v(t2)}, {v(t3)}, 14, {v(t2)}")
    A(f"v_bfe_u32 {v(t3)}, {v(t)}, 6, 4\nv_lshl_add_u32 {v(t2)}, {v(t3)}, 4, {v(t2)}\nv_lshl_add_u32 {v(vHA)}, {v(vQ)}, 8, {v(t2)}")
    sHS=59
    A(f"s_lshl_b32 s{sHS}, s{sCD}, 16\ns_lshl_b32 s{sT}, s{sJ}, 11\ns_add_u32 s{sHS}, s{sHS}, s{sT}\ns_add_u32 s{sHS}, s{sHS}, {HB}")
    A(f"v_lshlrev_b32 {v(vPoll)}, 2, {v(vSlot)}\nv_mov_b32 {v(t)}, {OOB}\nv_cmp_eq_u32 vcc, 0, v0\nv_cndmask_b32 {v(vSigA)}, {v(t)}, 0, vcc\nv_mov_b32 {v(vOne)}, 1")
    A(f"v_and_b32 {v(t)}, 6, {v(vRow8)}\nv_xor_b32 {v(t)}, {v(t)}, {v(vSlot)}\nv_lshlrev_b32 {v(t)}, 4, {v(t)}\nv_lshl_add_u32 {v(vD)}, {v(vRow8)}, 10, {v(t)}")
    for i in range(1,4): A(f"v_add_u32 {v(vD+i)}, {i*7168}, {v(vD)}")
    stamp('gen')
    cs=V.alloc(16,4); acc=V.alloc(16,4)
    for ch in range(4):
        A.wait(f'w1_{ch}'); A("s_barrier")
        if ch==0:
            A(f"s_cmp_lg_u32 s{sT+14}, 3\ns_cbranch_scc1 Lnoinit2"); A.cond=1
            A(f"buffer_store_dword {v(vOne)}, {v(vSigA)}, {srd(sDBG)}, 0 offen sc1"); A.cond=0; A("Lnoinit2:")
        rd=L();
        seq=[(ks,T) for ks in range(4*ch,4*ch+4) for T in range(4)]
        def rdA(ks,T): return f"ds_read_b64_tr_b16 {a((ks*4+T)*4,2)}, {v(vTA+T)} offset:{ks*4096}\nds_read_b64_tr_b16 {a((ks*4+T)*4+2,2)}, {v(vTA+T)} offset:{ks*4096+512}"
        D=4
        for i in range(D): A(rdA(*seq[i]))
        for i,(ks,T) in enumerate(seq):
            if i+D<len(seq): A(rdA(*seq[i+D]))
            A(f"v_mfma_f32_16x16x32_bf16 {v(cs+4*T,4)}, {a((ks*4+T)*4,4)}, {v(ones,4)}, {v(cs+4*T,4) if ks else 0}")
    A("s_barrier")
    stamp('w1rd')
    A(f"s_lshl_b32 s{sSO}, s{sW}, 17\ns_lshl_b32 s{sT}, s{sJ}, 7\ns_add_u32 s{sSO}, s{sSO}, s{sT}\ns_lshl_b32 s{sT}, s{sW}, 14\ns_add_u32 m0, s{sT}, {WB}")
    w2l=L()
    for k in range(4):
        for i in range(4): w2l(f"buffer_load_dwordx4 {v(vD+i)}, {srd(sW2)}, s{sSO} offen offset:{i*1024} lds",tag='w2')
        if k<3: w2l(f"s_add_u32 s{sSO}, s{sSO}, 32768\ns_add_u32 m0, m0, 4096")
    A(w2l)
    xb=V.alloc(16,4); S1=V.alloc(1); S2=V.alloc(1)
    A(f"v_mov_b32 {v(S1)}, 0\nv_mov_b32 {v(S2)}, 0")
    def rdX(ks):
        r=L()
        if ks%2==0: r.wait(f'x_{ks//2}')
        return r(f"ds_read_b128 {v(xb+4*(ks%4),4)}, {v(vXW+ks%2)} offset:{(ks//2)*2048}")
    A(rdX(0)); A(rdX(1))
    for ks in range(16):
        if ks+2<16: A(rdX(ks+2))
        b=xb+4*(ks%4)
        for T in range(4):
            A(f"v_mfma_f32_16x16x32_bf16 {v(acc+4*T,4)}, {a((ks*4+T)*4,4)}, {v(b,4)}, {v(acc+4*T,4) if ks else 0}")
            A(f"v_dot2c_f32_bf16 {v(S1)}, {v(ones)}, {v(b+T)}\nv_dot2c_f32_bf16 {v(S2)}, {v(b+T)}, {v(b+T)}")
    V.free(xb)
    stamp('g1')
    def allred(x,tmp):
        A(f"v_mov_b32 {v(tmp)}, {v(x)}\nv_permlane16_swap_b32 {v(x)}, {v(tmp)}\nv_add_f32 {v(x)}, {v(x)}, {v(tmp)}")
        A(f"v_mov_b32 {v(tmp)}, {v(x)}\nv_permlane32_swap_b32 {v(x)}, {v(tmp)}\nv_add_f32 {v(x)}, {v(x)}, {v(tmp)}")
    allred(S1,t); allred(S2,t2)
    mu=V.alloc(2); r1=V.alloc(2); K=V.alloc(6)
    A(f"v_mul_f32 {v(mu)}, {fb(-1/512)}, {v(S1)}\nv_mul_f32 {v(t)}, {v(mu)}, {v(mu)}\nv_fma_f32 {v(t)}, {v(S2)}, s60, -{v(t)}".replace('s60','s%d'%60))
    A.items.insert(len(A.items)-3,parse(f"s_mov_b32 s60, {fb(1/512)}")[0])
    A(f"v_max_f32 {v(t)}, 0, {v(t)}\nv_add_f32 {v(t2)}, {fb(1e-5)}, {v(t)}\nv_rsq_f32 {v(r1)}, {v(t2)}")
    A(f"v_mul_f32 {v(t2)}, {v(r1)}, {v(r1)}\nv_fmaak_f32 {v(t2)}, {v(t2)}, {v(t)}, {fb(1e-5)}\nv_rsq_f32 {v(t2)}, {v(t2)}\nv_mul_f32 {v(t2)}, {v(t2)}, {v(r1)}")
    def gelu_consts(Rr,K,tmp,out):
        out(f"v_rcp_f32 {v(K+4)}, {v(Rr)}\nv_mul_f32 {v(K)}, {fb(C1)}, {v(Rr)}\nv_mul_f32 {v(tmp)}, {v(Rr)}, {v(Rr)}\nv_mul_f32 {v(tmp)}, {v(tmp)}, {v(Rr)}\nv_mul_f32 {v(K+2)}, {fb(C2)}, {v(tmp)}")
    gelu_consts(t2,K,t3,A)
    def gelu(src,n,K,tmp,dst):
        r=L()
        for g in range(0,n,8):
            x=src+g
            for i in range(0,8,2): r(f"v_pk_mul_f32 {v(tmp+i,2)}, {v(x+i,2)}, {v(x+i,2)}")
            for i in range(0,8,2): r(f"v_pk_fma_f32 {v(tmp+i,2)}, {v(tmp+i,2)}, {v(K+2,2)}, {v(K,2)} op_sel_hi:[1,0,0]")
            for i in range(0,8,2): r(f"v_pk_mul_f32 {v(tmp+i,2)}, {v(tmp+i,2)}, {v(x+i,2)}")
            for i in range(8): r(f"v_exp_f32 {v(tmp+i)}, {v(tmp+i)}")
            for i in range(0,8,2): r(f"v_pk_fma_f32 {v(tmp+i,2)}, {v(tmp+i,2)}, {v(K+4,2)}, {v(K+4,2)} op_sel_hi:[1,0,0]")
            for i in range(8): r(f"v_rcp_f32 {v(tmp+i)}, {v(tmp+i)}")
            for i in range(0,8,2): r(f"v_pk_mul_f32 {v(tmp+i,2)}, {v(tmp+i,2)}, {v(x+i,2)}")
            for i in range(0,8,2): r(f"v_cvt_pk_bf16_f32 {v(dst+g//2+i//2)}, {v(tmp+i)}, {v(tmp+i+1)}")
        return r
    for i in range(0,16,2): A(f"v_pk_fma_f32 {v(acc+i,2)}, {v(cs+i,2)}, {v(mu,2)}, {v(acc+i,2)} op_sel_hi:[1,0,1]")
    for pi in range(2):
        A(gelu(acc+8*pi,8,K,tmp,pk+4*pi))
        for i in range(4): A(f"v_and_b32 {v(pk+4*pi+i)}, {v(vHM)}, {v(pk+4*pi+i)}")
        A(f"buffer_store_dwordx4 {v(pk+4*pi,4)}, {v(vHA)}, {srd(sWS)}, s{sHS} offen offset:{pi*1024} sc1",tag='hst')
    V.free(cs,vHA,vHM,S1,S2,K)
    stamp('hst')
    A(f"s_lshl_b32 s{sT}, s{sW}, 6\ns_add_u32 s{sT}, s{sT}, {R1L}\nv_lshl_add_u32 {v(t)}, {v(vN)}, 2, s{sT}\nds_write_b32 {v(t)}, {v(r1)}")
    A(f"v_lshrrev_b32 {v(t)}, 1, {v(vN)}\nv_lshrrev_b32 {v(t2)}, 1, {v(vQ)}\nv_xor_b32 {v(t)}, {v(t)}, {v(t2)}\nv_lshlrev_b32 {v(t)}, 4, {v(t)}\nv_lshl_add_u32 {v(t)}, {v(vN)}, 7, {v(t)}")
    A(f"v_and_b32 {v(t2)}, 1, {v(vQ)}\nv_lshl_add_u32 {v(t)}, {v(t2)}, 3, {v(t)}\ns_lshl_b32 s{sT}, s{sJ}, 11\ns_add_u32 s{sT}, s{sT}, s{sXA}\nv_add_u32 {v(t)}, s{sT}, {v(t)}")
    for T in range(4):
        if T: A(f"v_xor_b32 {v(t2)}, {32*T}, {v(t)}")
        A(f"ds_read_b64 {v(tmp+2*T,2)}, {v(t2 if T else t)}")
    A(f"v_mul_f32 {v(mu)}, {v(mu)}, {v(r1)}")
    for i in range(8): A(f"v_lshlrev_b32 {v(acc+2*i)}, 16, {v(tmp+i)}\nv_and_b32 {v(acc+2*i+1)}, 0xffff0000, {v(tmp+i)}")
    for i in range(0,16,2): A(f"v_pk_fma_f32 {v(acc+i,2)}, {v(acc+i,2)}, {v(r1,2)}, {v(mu,2)} op_sel_hi:[1,0,0]")
    V.free(mu,r1)
    def signal(soff_expr,pre=None,atomic=False):
        lb=A.lab('Lsig')
        A(f"s_cmp_lg_u32 s{sW}, 0\ns_cbranch_scc1 {lb}"); A.cond=1
        if pre: pre()
        A(soff_expr)
        A(f"buffer_{'atomic_add' if atomic else 'store_dword'} {v(vOne)}, {v(vSigA)}, {srd(sWS)}, s{sT} offen sc1")
        A.cond=0; A(lb+":")
    def spin(addr,sr,soff,target):
        lp=A.lab('Lp'); ld=A.lab('Ld')
        A(f"s_mov_b32 s{sCNT}, 0\n{lp}:\nbuffer_load_dword {v(dmy)}, {v(addr)}, {srd(sr)}, {soff} offen sc1")
        A(f"s_add_u32 s{sCNT}, s{sCNT}, 1\ns_cmp_gt_u32 s{sCNT}, 5000\ns_cbranch_scc1 {ld}\ns_waitcnt vmcnt(0)\nv_cmp_gt_u32 vcc, {target}, {v(dmy)}\ns_cbranch_vccnz {lp}\n{ld}:\ns_waitcnt vmcnt(0)")
    def poll(soff_expr,addr=None,target=1):
        lb=A.lab('Lpoll')
        A(f"s_cmp_lg_u32 s{sW}, 0\ns_cbranch_scc1 {lb}"); A.cond=1
        A(soff_expr); spin(vPoll if addr is None else addr,sWS,f"s{sT}",target)
        A.cond=0; A(lb+":\ns_barrier")
    A.wait('hst'); A("s_waitcnt lgkmcnt(0)\ns_barrier")
    def chk_init():
        A(f"v_mov_b32 {v(t)}, 0"); spin(t,sDBG,0,1)
    signal(f"s_lshl_b32 s{sT}, s{sCD}, 7\ns_lshl_b32 s{sT+1}, s{sJ}, 2\ns_add_u32 s{sT}, s{sT}, s{sT+1}",pre=chk_init)
    stamp('sig1')
    dacc=V.alloc(32,4); ar=V.alloc(32,4); vX2=V.alloc(2); rr=V.alloc(16,4)
    A(f"v_add_u32 {v(vX2)}, {2*XS}, {v(vXA)}\nv_add_u32 {v(vX2+1)}, {2*XS}, {v(vXA+1)}")
    A(f"v_lshlrev_b32 {v(t)}, 4, {v(vQ)}\nv_add_u32 {v(t)}, {R1L}, {v(t)}")
    for T in range(4): A(f"ds_read_b128 {v(rr+4*T,4)}, {v(t)} offset:{64*T}")
    seq=[(ks,T) for ks in range(16) for T in range(4)]
    def rdD(i):
        ks,T=seq[i]; base=(vXA if T<2 else vX2)+ks%2
        return f"ds_read_b128 {v(ar+4*(i%8),4)}, {v(base)} offset:{(T%2)*XS+(ks//2)*2048}"
    for i in range(6): A(rdD(i))
    for i,(ks,T) in enumerate(seq):
        if i+6<64: A(rdD(i+6))
        d=dacc+16*(ks//8)+4*T
        A(f"v_mfma_f32_16x16x32_bf16 {v(d,4)}, {v(ar+4*(i%8),4)}, {v(Wd+4*(ks%8),4)}, {v(d,4) if ks%8 else 0}")
    V.free(Wd,vX2,vXA,vXW)
    A("s_barrier")
    A(f"v_bfe_u32 {v(t)}, v0, 3, 1\nv_lshlrev_b32 {v(t)}, 6, {v(t)}\nv_bfe_u32 {v(t2)}, v0, 4, 1\nv_lshl_add_u32 {v(t)}, {v(t2)}, 5, {v(t)}\nv_and_b32 {v(t2)}, 3, v0\nv_lshl_add_u32 {v(t)}, {v(t2)}, 3, {v(t)}")
    A(f"v_lshl_add_u32 {v(t)}, {v(vRR)}, 7, {v(t)}\nv_lshrrev_b32 {v(t2)}, 5, v0\nv_lshl_add_u32 {v(t)}, {v(t2)}, 9, {v(t)}\nv_add_u32 {v(vTB)}, s{sXA}, {v(t)}\nv_xor_b32 {v(vTB+1)}, 64, {v(vTB)}")
    A(f"s_mul_i32 s{sT}, s{sJ}, 3\ns_add_u32 s{sT}, s{sT}, s{sW}\ns_lshr_b32 s{sT+1}, s{sJ}, 1\ns_add_u32 s{sT+1}, s{sT+1}, 24\ns_cmp_lt_u32 s{sW}, 3\ns_cselect_b32 s{sPAIR}, s{sT}, s{sT+1}")
    A(f"v_and_b32 {v(t)}, 2, {v(vRow8)}\nv_lshlrev_b32 {v(t)}, 1, {v(t)}\nv_xor_b32 {v(t)}, {v(t)}, {v(vSlot)}\nv_lshlrev_b32 {v(vCh)}, 4, {v(t)}")
    A(f"v_mul_u32_u24 {v(t)}, 3584, {v(vRow8)}\nv_add_u32 {v(vD)}, {v(t)}, {v(vCh)}")
    for i in range(1,4): A(f"v_add_u32 {v(vD+i)}, {i*(8*3584-1024)}, {v(vD)}")
    sW3O=61
    A(f"s_lshl_b32 s{sW3O}, s{sPAIR}, 7")
    def dmaW3(b):
        r=L(); r(f"s_add_u32 m0, s{sXA}, {(b%5)*4096}\ns_add_u32 s{sSO}, s{sW3O}, {b*32*3584}")
        for i in range(4): r(f"buffer_load_dwordx4 {v(vD+i)}, {srd(sW3)}, s{sSO} offen offset:{i*1024} lds",tag=f'w3_{b}')
        return r
    for b in range(5): A(dmaW3(b))
    sg=V.alloc(2); A(f"v_mov_b32 {v(sg)}, {v(vSig)}")
    for i in range(0,16,2): A(f"v_pk_fma_f32 {v(dacc+i,2)}, {v(dacc+16+i,2)}, {v(sg,2)}, {v(dacc+i,2)} op_sel_hi:[1,0,1]")
    for i in range(0,16,2): A(f"v_pk_mul_f32 {v(dacc+i,2)}, {v(dacc+i,2)}, {v(rr+i,2)}")
    for i in range(0,16,2): A(f"v_cvt_pk_bf16_f32 {v(ar+i//2)}, {v(dacc+i)}, {v(dacc+i+1)}")
    for i in range(8): A(f"v_xor_b32_dpp {v(ar+8+i)}, {v(ar+i)}, {v(vSgn)} quad_perm:[1,0,3,2] row_mask:0xf bank_mask:0xf")
    V.free(sg,vSig,vSgn)
    for p in range(2):
        for tau in range(2):
            A(f"v_mfma_f32_16x16x32_bf16 {v(rr+8*p+4*tau,4)}, {v(ar+4*p,4)}, {v(F32+4*tau,4)}, 0")
    for p in range(2):
        for tau in range(2):
            A(f"v_mfma_f32_16x16x32_bf16 {v(rr+8*p+4*tau,4)}, {v(ar+8+4*p,4)}, {v(F32+8+4*tau,4)}, {v(rr+8*p+4*tau,4)}")
    A(f"s_lshl_b32 s{sT}, s{sW}, 6\ns_add_u32 s{sT}, s{sT}, {YT}\nv_mul_u32_u24 {v(t)}, 272, {v(vN)}\nv_lshl_add_u32 {v(t)}, {v(vQ)}, 4, {v(t)}\nv_add_u32 {v(t)}, s{sT}, {v(t)}")
    for tau in range(2):
        for r_ in range(4): A(f"v_cvt_pk_bf16_f32 {v(ar+16+4*tau+r_)}, {v(rr+4*tau+r_)}, {v(rr+8+4*tau+r_)}")
        A(f"ds_write_b128 {v(t)}, {v(ar+16+4*tau,4)} offset:{tau*16*272}")
    A(f"s_mul_i32 s{sT}, s{sW}, {8*272}\ns_add_u32 s{sT}, s{sT}, {YT}\nv_mul_u32_u24 {v(t)}, 272, {v(vQ)}\nv_lshl_add_u32 {v(t)}, {v(vN)}, 4, {v(t)}\nv_add_u32 {v(t)}, s{sT}, {v(t)}")
    A(f"v_lshlrev_b32 {v(t2)}, 16, {v(vQ)}\nv_lshl_add_u32 {v(t2)}, {v(vN)}, 4, {v(t2)}")
    A(f"s_lshl_b32 s{sT}, s{sW}, 19\ns_lshl_b32 s{sT+1}, s{sC}, 11\ns_add_u32 s{sT}, s{sT}, s{sT+1}\ns_lshl_b32 s{sT+1}, s{sJ}, 8\ns_add_u32 s{sT}, s{sT}, s{sT+1}\ns_add_u32 s{sT}, s{sT}, {YB}\ns_add_u32 s{sT+1}, s{sT}, {4*65536}")
    A("s_waitcnt lgkmcnt(0)\ns_barrier")
    for i in range(2): A(f"ds_read_b128 {v(ar+4*i,4)}, {v(t)} offset:{i*4*272}")
    for i in range(2): A(f"buffer_store_dwordx4 {v(ar+4*i,4)}, {v(t2)}, {srd(sWS)}, s{sT+i} offen sc1",tag='yst')
    V.free(dacc,ar,rr,F32)
    stamp('dft')
    A(f"v_lshlrev_b32 {v(t)}, 9, {v(vQ)}")
    for T in range(4): A(f"v_sub_u32 {v(vTA+T)}, {v(vTA+T)}, {v(t)}")
    A.wait('w2')
    poll(f"s_lshl_b32 s{sT}, s{sC}, 7")
    stamp('poll1')
    hb=V.alloc(64,4); ar=V.alloc(32,4)
    sCB=62
    A(f"s_lshl_b32 s{sCB}, s{sC}, 16\ns_lshl_b32 s{sT}, s{sW}, 14\ns_add_u32 s{sCB}, s{sCB}, s{sT}")
    for ks in range(16):
        if ks%4==0: A(f"s_add_u32 s{sSO}, s{sCB}, {HB+ks*1024}")
        A(f"buffer_load_dwordx4 {v(hb+4*ks,4)}, {v(vL16)}, {srd(sWS)}, s{sSO} offen offset:{(ks%4)*1024} sc1")
    def rdA2(i):
        ks,T=seq[i]; d=ar+4*(i%8)
        return f"ds_read_b64_tr_b16 {v(d,2)}, {v(vTA+T)} offset:{ks*4096}\nds_read_b64_tr_b16 {v(d+2,2)}, {v(vTA+T)} offset:{ks*4096+2048}"
    for i in range(6): A(rdA2(i))
    for i,(ks,T) in enumerate(seq):
        if i+6<64: A(rdA2(i+6))
        A(f"v_mfma_f32_16x16x32_bf16 {v(acc+4*T,4)}, {v(ar+4*(i%8),4)}, {v(hb+4*ks,4)}, {v(acc+4*T,4)}")
    V.free(hb,ar,vTA)
    stamp('g2')
    SS=V.alloc(2)
    A(f"v_mov_b32 {v(SS)}, 0\nv_mov_b32 {v(SS+1)}, 0\ns_lshl_b32 s{sT}, s{sJ}, 11\ns_add_u32 s{sT}, s{sT}, s{sCB}\ns_add_u32 s{sT}, s{sT}, {X1B}")
    for i in range(8): A(f"v_cvt_pk_bf16_f32 {v(pk+i)}, {v(acc+2*i)}, {v(acc+2*i+1)}")
    for pi in range(2): A(f"buffer_store_dwordx4 {v(pk+4*pi,4)}, {v(vL16)}, {srd(sWS)}, s{sT} offen offset:{pi*1024} sc1")
    for i in range(8): A(f"v_dot2c_f32_bf16 {v(SS)}, {v(ones)}, {v(pk+i)}\nv_dot2c_f32_bf16 {v(SS+1)}, {v(pk+i)}, {v(pk+i)}")
    allred(SS,t); allred(SS+1,t2)
    A(f"v_lshlrev_b32 {v(t)}, 3, v0\nv_mov_b32 {v(t2)}, {OOB}\nv_cmp_gt_u32 vcc, 16, v0\nv_cndmask_b32 {v(t)}, {v(t2)}, {v(t)}, vcc")
    A(f"s_lshl_b32 s{sT}, s{sC}, 12\ns_lshl_b32 s{sT+1}, s{sJ}, 9\ns_add_u32 s{sT}, s{sT}, s{sT+1}\ns_lshl_b32 s{sT+1}, s{sW}, 7\ns_add_u32 s{sT}, s{sT}, s{sT+1}\ns_add_u32 s{sT}, s{sT}, {STB}")
    A(f"buffer_store_dwordx2 {v(SS,2)}, {v(t)}, {srd(sWS)}, s{sT} offen sc1",tag='x1st')
    V.free(acc,SS)
    stamp('x1st')
    sel=V.alloc(4,4); csx=V.alloc(8,4)
    A(f"v_bfe_u32 {v(t)}, v0, 2, 1\nv_bfe_u32 {v(t2)}, v0, 4, 1\nv_cmp_eq_u32 vcc, {v(t)}, {v(t2)}\nv_cndmask_b32 {v(sel)}, 0, {v(ones)}, vcc")
    for i in range(1,4): A(f"v_mov_b32 {v(sel+i)}, {v(sel)}")
    def trW3(b):
        r=L(); r.wait(f'w3_{b}')
        for f in range(2):
            for u in range(2):
                for hf in range(2):
                    r(f"ds_read_b64_tr_b16 {a(f*128+(2*b+u)*4+2*hf,2)}, {v(vTB+f)} offset:{(b%5)*4096+hf*2048+u*1024}",tag=f'w3r_{b}')
        return r
    def csW3(b):
        r=L()
        for u in range(2):
            for f in range(2):
                r(f"v_mfma_f32_16x16x32_bf16 {v(csx+4*f,4)}, {v(sel,4)}, {a(f*128+(2*b+u)*4,4)}, {v(csx+4*f,4) if (b or u) else 0}")
        return r
    for b in range(5): A(trW3(b)); A(csW3(b))
    A.wait('x1st'); A("s_barrier")
    signal(f"s_lshl_b32 s{sT}, s{sC}, 7\ns_lshl_b32 s{sT+1}, s{sJ}, 2\ns_add_u32 s{sT}, s{sT}, s{sT+1}\ns_add_u32 s{sT}, s{sT}, 32")
    signal(f"s_lshl_b32 s{sT}, s{sJ}, 7\ns_add_u32 s{sT}, s{sT}, {FYO}",atomic=True)
    stamp('sig2')
    for b in range(5,10): A(dmaW3(b))
    for b in range(5,16):
        A(trW3(b)); A(csW3(b))
        if b+5<16: A(dmaW3(b+5))
    V.free(sel,ones,vRR)
    for f in range(2):
        A(f"v_cvt_pk_bf16_f32 {v(t)}, {v(csx+4*f)}, {v(csx+4*f)}\nv_and_b32 {v(t)}, 0xffff0000, {v(t)}\nv_sub_f32 {v(t2)}, {v(csx+4*f)}, {v(t)}\nv_cvt_pk_bf16_f32 {v(Ax+2*f)}, {v(t)}, {v(t2)}\nv_mov_b32 {v(Ax+2*f+1)}, 0")
    for i in range(6): A(f"v_mov_b32 {v(Bx+i)}, 0")
    V.free(csx)
    A(f"v_lshl_add_u32 {v(vD)}, {v(vRow8)}, 10, {v(vCh)}")
    for i in range(1,4): A(f"v_add_u32 {v(vD+i)}, {i*7168}, {v(vD)}")
    V.free(vCh)
    sW4O,sW4P=61,63
    A(f"s_mul_i32 s{sW4O}, s{sW}, {384*1024}\ns_lshl_b32 s{sT}, s{sJ}, 7\ns_add_u32 s{sW4O}, s{sW4O}, s{sT}\ns_lshl_b32 s{sW4P}, s{sW}, 16\ns_add_u32 s{sW4P}, s{sW4P}, s{sT}")
    def dmaW4(b):
        r=L(); r(f"s_add_u32 m0, s{sXA}, {(b%5)*4096}")
        r(f"s_add_u32 s{sSO}, s{sW4O}, {b*32768}" if b<12 else f"s_add_u32 s{sSO}, s{sW4P}, {1536*1024+(b-12)*32768}")
        for i in range(4): r(f"buffer_load_dwordx4 {v(vD+i)}, {srd(sW4)}, s{sSO} offen offset:{i*1024} lds",tag=f'w4_{b}')
        return r
    NV4=7
    w4v=V.alloc(16*NV4,4)
    def w4reg(b,u,f): return (w4v+16*b if b<NV4 else 256+16*(b-NV4))+8*u+4*f
    def trW4(b):
        r=L(); r.wait(f'w4_{b}')
        for u in range(2):
            for f in range(2):
                for hf in range(2):
                    r(f"ds_read_b64_tr_b16 {R(w4reg(b,u,f)+2*hf,2)}, {v(vTB+f)} offset:{(b%5)*4096+u*2048+hf*1024}",tag=f'w4r_{b}')
        return r
    stamp('w3rd')
    poll(f"s_lshl_b32 s{sT}, s{sC}, 7\ns_add_u32 s{sT}, s{sT}, 32")
    stamp('poll2')
    A(f"s_lshl_b32 s{sT}, s{sW}, 10\ns_add_u32 m0, s{sT}, {STL}\ns_lshl_b32 s{sT+1}, s{sC}, 12\ns_add_u32 s{sT}, s{sT}, s{sT+1}\ns_add_u32 s{sT}, s{sT}, {STB}")
    A(f"buffer_load_dwordx4 {v(vL16)}, {srd(sWS)}, s{sT} offen sc1 lds")
    A(f"s_and_b32 s{sT}, s{sW}, 1\ns_lshl_b32 s{sT}, s{sT}, 14\ns_lshr_b32 s{sT+1}, s{sW}, 1\ns_lshl_b32 s{sT+1}, s{sT+1}, 12\ns_add_u32 s{sT}, s{sT}, s{sT+1}\ns_lshl_b32 s{sT+1}, s{sC}, 16\ns_add_u32 s{sT+1}, s{sT+1}, s{sT}")
    for P in range(2):
        for kh in range(2):
            o=P*32768+kh*8192
            A(f"s_add_u32 m0, s{sT}, {WB+o}\ns_add_u32 s{sSO}, s{sT+1}, {X1B+o}")
            for i in range(4): A(f"buffer_load_dwordx4 {v(vL16)}, {srd(sWS)}, s{sSO} offen offset:{i*1024} sc1 lds",tag=f'x1_{P}{kh}')
    for b in range(5): A(dmaW4(b))
    vBA=V.alloc(1); br=V.alloc(16,4); acc=V.alloc(64,4); KK=V.alloc(6); muP=V.alloc(2); rP=V.alloc(2)
    A(f"v_bfe_u32 {v(t)}, v0, 4, 1\nv_lshlrev_b32 {v(t)}, 14, {v(t)}\nv_lshrrev_b32 {v(t2)}, 5, v0\nv_lshl_add_u32 {v(t)}, {v(t2)}, 8, {v(t)}\nv_lshl_add_u32 {v(t)}, {v(vN)}, 4, {v(t)}\nv_add_u32 {v(vBA)}, {WB}, {v(t)}")
    sH3=58
    A(f"s_mul_i32 s{sH3}, s{sC}, 229376\ns_add_u32 s{sH3}, s{sH3}, {H3B}\ns_lshl_b32 s{sT}, s{sPAIR}, 12\ns_add_u32 s{sHS}, s{sH3}, s{sT}")
    def g3(P):
        groups=[]
        def rdB(k): return f"ds_read_b128 {v(br+4*(k%4),4)}, {v(vBA)} offset:{P*32768+(k//2)*1024+(k%2)*512}"
        pre=L()
        if P==0: pre.wait('x1_00'); pre("s_barrier")
        for k in range(3): pre(rdB(k))
        for k in range(32):
            for f in range(2):
                g=L()
                if f==0 and k+3<32:
                    if P==0 and k+3==16: g.wait('x1_01'); g("s_barrier")
                    g(rdB(k+3))
                if P==0 and k==31 and f==0: g.wait('x1_11'); g("s_barrier")
                d=acc+32*P+16*f
                g(f"v_mfma_f32_32x32x16_bf16 {v(d,16)}, {a(f*128+k*4,4)}, {v(br+4*(k%4),4)}, {v(d,16) if k else 0}")
                groups.append(g)
        for f in range(2):
            d=acc+32*P+16*f
            groups.append(L()(f"v_mfma_f32_32x32x16_bf16 {v(d,16)}, {v(Ax,4)}, {v(Bx+2-2*f,4)}, {v(d,16)}"))
        return pre,groups
    st=L()
    st(f"v_lshlrev_b32 {v(t)}, 3, v0\nv_add_u32 {v(t)}, {STL}, {v(t)}")
    for half in range(2):
        for m in range(4): st(f"ds_read_b64 {v(tmp+2*m,2)}, {v(t)} offset:{(4*half+m)*512}")
        st(f"v_pk_add_f32 {v(tmp,2)}, {v(tmp,2)}, {v(tmp+2,2)}\nv_pk_add_f32 {v(tmp+4,2)}, {v(tmp+4,2)}, {v(tmp+6,2)}")
        st(f"v_pk_add_f32 {v(muP if half==0 else tmp,2)}, {v(tmp,2)}, {v(tmp+4,2)}")
    st(f"v_pk_add_f32 {v(tmp,2)}, {v(tmp,2)}, {v(muP,2)}")
    st(f"v_mul_f32 {v(muP)}, {fb(-1/512)}, {v(tmp)}\nv_mul_f32 {v(t)}, {v(muP)}, {v(muP)}\nv_fma_f32 {v(t)}, {v(tmp+1)}, s60, -{v(t)}\nv_max_f32 {v(t)}, 0, {v(t)}\nv_add_f32 {v(t)}, {fb(1e-5)}, {v(t)}\nv_rsq_f32 {v(rP)}, {v(t)}")
    st(f"v_mov_b32 {v(muP+1)}, {v(muP)}\nv_mov_b32 {v(rP+1)}, {v(rP)}\nv_permlane32_swap_b32 {v(muP)}, {v(muP+1)}\nv_permlane32_swap_b32 {v(rP)}, {v(rP+1)}")
    def setB(P):
        r=L()
        r(f"v_cvt_pk_bf16_f32 {v(t)}, {v(muP+P)}, {v(muP+P)}\nv_and_b32 {v(t2)}, 0xffff0000, {v(t)}\nv_sub_f32 {v(t2)}, {v(muP+P)}, {v(t2)}\nv_cvt_pk_bf16_f32 {v(t2)}, {v(t2)}, {v(t2)}")
        r(f"v_cmp_gt_u32 vcc, 32, v0\nv_cndmask_b32 {v(Bx+2)}, {v(t2)}, {v(t)}, vcc")
        return r
    def epi3(P):
        r=L(); gelu_consts(rP+P,KK,t3,r)
        r(f"s_add_u32 s{sSO2}, s{sHS}, {P*114688}")
        for f in range(2):
            for u in range(2):
                r(gelu(acc+32*P+16*f+8*u,8,KK,tmp,pk+4*u))
                r(f"buffer_store_dwordx4 {v(pk+4*u,4)}, {v(vL16)}, {srd(sWS)}, s{sSO2} offen offset:{f*2048+u*1024} sc1",tag=f'h3st{P}')
        return r
    pre,gr=g3(0)
    fill=L(); fill(st); fill(setB(0))
    for b in range(5): fill(trW4(b)); fill.wait(f'w4r_{b}'); fill(dmaW4(b+5))
    A(pre); A(interleave(gr[:-2],fill,4,start=2)); A(gr[-2]); A(gr[-1])
    stamp('g3a')
    pre,gr=g3(1)
    fill=L(); fill(epi3(0)); fill(setB(1))
    A(pre); A(interleave(gr[:-2],fill,5,start=1)); A(gr[-2]); A(gr[-1])
    A.wait('h3st0'); A("s_barrier")
    signal(f"s_lshl_b32 s{sT}, s{sC}, 7\ns_lshl_b32 s{sT+1}, s{sJ}, 2\ns_add_u32 s{sT}, s{sT}, s{sT+1}\ns_add_u32 s{sT}, s{sT}, 64")
    stamp('g3b')
    A(epi3(1))
    V.free(vBA,br,KK,muP,rP,Ax,Bx)
    x1v=V.alloc(8,4); xv=V.alloc(8,4); vOA=V.alloc(1)
    A(f"s_lshr_b32 s{sT}, s{sW}, 1\ns_lshl_b32 s{sT}, s{sT}, 14\ns_and_b32 s{sT+1}, s{sW}, 1\ns_lshl_b32 s{sT+1}, s{sT+1}, 7\ns_add_u32 s{sT}, s{sT}, s{sT+1}\ns_lshl_b32 s{sT+1}, s{sJ}, 11\ns_add_u32 s{sT}, s{sT}, s{sT+1}\ns_add_u32 s{sT}, s{sT}, {WB}")
    A(f"v_bfe_u32 {v(t)}, v0, 2, 1\nv_lshlrev_b32 {v(t)}, 10, {v(t)}\nv_and_b32 {v(t2)}, 1, v0\nv_lshl_add_u32 {v(t)}, {v(t2)}, 9, {v(t)}\nv_lshl_add_u32 {v(t)}, {v(vRow8)}, 4, {v(t)}\nv_bfe_u32 {v(t2)}, v0, 1, 1\nv_lshl_add_u32 {v(t)}, {v(t2)}, 3, {v(t)}\nv_add_u32 {v(t)}, s{sT}, {v(t)}")
    for P in range(2):
        for q_ in range(2): A(f"ds_read_b64 {v(x1v+4*P+2*q_,2)}, {v(t)} offset:{P*32768+q_*256}")
    for b in range(5,10):
        A(trW4(b))
        if b+5<14: A.wait(f'w4r_{b}'); A(dmaW4(b+5))
    A.wait('h3st1'); A("s_waitcnt lgkmcnt(0)\ns_barrier")
    signal(f"s_lshl_b32 s{sT}, s{sC}, 7\ns_lshl_b32 s{sT+1}, s{sJ}, 2\ns_add_u32 s{sT}, s{sT}, s{sT+1}\ns_add_u32 s{sT}, s{sT}, 96")
    stamp('sig3b')
    A(f"v_lshlrev_b32 {v(t3)}, 7, {v(vSlot)}")
    poll(f"s_mov_b32 s{sT}, {FYO}",addr=t3,target=32)
    sOO=63
    A(f"v_lshlrev_b32 {v(vOA)}, 16, {v(vRow8)}\nv_lshl_add_u32 {v(vOA)}, {v(vSlot)}, 4, {v(vOA)}")
    A(f"s_lshl_b32 s{sOO}, s{sW}, 19\ns_lshl_b32 s{sT}, s{sC}, 10\ns_add_u32 s{sOO}, s{sOO}, s{sT}\ns_lshl_b32 s{sT}, s{sJ}, 7\ns_add_u32 s{sOO}, s{sOO}, s{sT}\ns_add_u32 s{sT}, s{sOO}, 32768")
    A(f"buffer_load_dwordx4 {v(xv,4)}, {v(vOA)}, {srd(sX)}, s{sOO} offen\nbuffer_load_dwordx4 {v(xv+4,4)}, {v(vOA)}, {srd(sX)}, s{sT} offen")
    YA=256+224
    A(f"s_and_b32 s{sT}, s{sW}, 1\ns_lshl_b32 s{sT}, s{sT}, 5\ns_lshl_b32 s{sT+1}, s{sJ}, 6\ns_add_u32 s{sT}, s{sT}, s{sT+1}")
    A(f"v_and_b32 {v(t)}, 31, v0\nv_add_u32 {v(t)}, s{sT}, {v(t)}")
    A(f"s_cmp_ge_u32 s{sJ}, 4\ns_cselect_b32 s{sT+2}, -1, 1")
    A(f"v_mul_i32_i24 {v(t2)}, s{sT+2}, {v(t)}\nv_and_b32 {v(t2)}, 255, {v(t2)}\nv_lshlrev_b32 {v(t2)}, 3, {v(t2)}\nv_lshrrev_b32 {v(t3)}, 5, v0\nv_lshl_add_u32 {v(t2)}, {v(t3)}, 12, {v(t2)}")
    A(f"v_cmp_eq_u32 vcc, 0, {v(t)}\nv_mov_b32 {v(t)}, {OOB}\nv_cndmask_b32 {v(t2)}, {v(t2)}, {v(t)}, vcc")
    A(f"s_mul_i32 s{sT}, s{sC}, s{sT+2}\ns_and_b32 s{sT}, s{sT}, 31\ns_lshl_b32 s{sT}, s{sT}, 16\ns_add_u32 s{sSO}, s{sT}, {YB}")
    for ks in range(8):
        for i in range(2): A(f"buffer_load_dwordx2 {R(YA+4*ks+2*i,2)}, {v(t2)}, {srd(sWS)}, s{sSO} offen offset:{i*2048} sc1")
        if ks<7: A(f"s_add_u32 s{sSO}, s{sSO}, 8192")
    ang=V.alloc(4); step=V.alloc(2); wf=V.alloc(8,4)
    A(f"s_lshr_b32 s{sT}, s{sW}, 1\ns_lshl_b32 s{sT}, s{sT}, 5\ns_add_u32 s{sT}, s{sT}, s{sC}\nv_and_b32 {v(t)}, 31, v0\nv_lshl_add_u32 {v(t)}, {v(t)}, 6, s{sT}\nv_mul_i32_i24 {v(t)}, s{sT+2}, {v(t)}")
    A(f"v_cvt_f32_i32 {v(t)}, {v(t)}\nv_mul_f32 {v(t)}, {fb(1/2048)}, {v(t)}\nv_cvt_f32_u32 {v(t3)}, {v(t3)}\nv_mul_f32 {v(t3)}, 2.0, {v(t3)}\nv_mul_f32 {v(ang)}, {v(t3)}, {v(t)}")
    A(f"v_fmamk_f32 {v(ang+1)}, {v(t)}, {fb(32)}, {v(ang)}\nv_add_f32 {v(ang+2)}, {v(ang)}, {v(t)}\nv_add_f32 {v(ang+3)}, {v(ang+1)}, {v(t)}\nv_mul_f32 {v(step)}, 4.0, {v(t)}")
    for ks in range(8):
        for i in range(4): A(f"v_cos_f32 {v(tmp+i)}, {v(ang+i)}\nv_sin_f32 {v(tmp+4+i)}, {v(ang+i)}")
        if ks<7:
            for i in range(0,4,2): A(f"v_pk_add_f32 {v(ang+i,2)}, {v(ang+i,2)}, {v(step,2)} op_sel_hi:[1,0]")
        wq=wf+4*(ks%2)
        A(f"v_cvt_pk_bf16_f32 {v(wq)}, {v(tmp)}, {v(tmp+1)}\nv_cvt_pk_bf16_f32 {v(wq+1)}, {v(tmp+4)}, {v(tmp+5)}\nv_cvt_pk_bf16_f32 {v(wq+2)}, {v(tmp+2)}, {v(tmp+3)}\nv_cvt_pk_bf16_f32 {v(wq+3)}, {v(tmp+6)}, {v(tmp+7)}")
        A(f"v_mfma_f32_32x32x16_bf16 {v(acc,16)}, {R(YA+4*ks,4)}, {v(wq,4)}, {v(acc,16) if ks else 0}")
    V.free(ang,step,wf)
    vPW=V.alloc(1); vPR=V.alloc(1)
    A(f"v_and_b32 {v(t)}, 31, v0\nv_mul_u32_u24 {v(t)}, 272, {v(t)}\nv_lshrrev_b32 {v(t2)}, 5, v0\nv_lshl_add_u32 {v(vPW)}, {v(t2)}, 4, {v(t)}")
    A(f"s_lshr_b32 s{sT}, s{sW}, 1\ns_mul_i32 s{sT}, s{sT}, {32*272}\ns_and_b32 s{sT+1}, s{sW}, 1\ns_lshl_b32 s{sT+1}, s{sT+1}, 7\ns_add_u32 s{sT}, s{sT}, s{sT+1}\ns_add_u32 s{sT}, s{sT}, {SBL}\nv_add_u32 {v(t)}, s{sT}, {v(vPW)}")
    for rg in range(4): A(f"ds_write_b128 {v(t)}, {v(acc+4*rg,4)} offset:{rg*32}")
    A(f"s_mul_i32 s{sT}, s{sW}, 8704\nv_add_u32 {v(vPW)}, s{sT}, {v(vPW)}")
    A(f"s_mul_i32 s{sT}, s{sW}, {8*272}\nv_mul_u32_u24 {v(t)}, 272, {v(vRow8)}\nv_lshl_add_u32 {v(t)}, {v(vSlot)}, 5, {v(t)}\nv_add_u32 {v(vPR)}, s{sT}, {v(t)}")
    for b in range(10,14): A(trW4(b))
    stamp('seq2')
    HA=256+112
    def ldH(P):
        r=L()
        r(f"s_mul_i32 s{sT}, s{sW}, {12*2048}\ns_add_u32 s{sT}, s{sT}, s{sH3}\ns_lshl_b32 s{sT+1}, s{sW}, 12\ns_add_u32 s{sT+1}, s{sT+1}, s{sH3}")
        for k in range(28):
            if k%4==0: r(f"s_add_u32 s{sSO}, s{sT}, {P*114688+k*1024}" if k<24 else f"s_add_u32 s{sSO}, s{sT+1}, {P*114688+48*2048}")
            r(f"buffer_load_dwordx4 {R(HA+4*k,4)}, {v(vL16)}, {srd(sWS)}, s{sSO} offen offset:{(k%4)*1024} sc1")
        return r
    def g4(P):
        gr=[]
        for k in range(28):
            for f in range(2):
                d=acc+32*P+16*f
                gr.append(L()(f"v_mfma_f32_32x32x16_bf16 {v(d,16)}, {R(w4reg(k//2,k%2,f),4)}, {R(HA+4*k,4)}, {v(d,16) if k else 0}"))
        return gr
    def wrP(P):
        r=L(); r(f"v_add_u32 {v(t)}, {PBA if P==0 else PBB}, {v(vPW)}")
        for f in range(2):
            for rg in range(4): r(f"ds_write_b128 {v(t)}, {v(acc+32*P+16*f+4*rg,4)} offset:{f*128+rg*32}")
        r("s_waitcnt lgkmcnt(0)\ns_barrier")
        return r
    def epi4(P):
        r=L(); e=acc+32*P
        r(f"v_add_u32 {v(t)}, {PBA if P==0 else PBB}, {v(vPR)}\nv_add_u32 {v(t2)}, {SBL+P*32*272}, {v(vPR)}")
        for src in range(4):
            for i in range(2): r(f"ds_read_b128 {v(e+8*src+4*i,4)}, {v(t)} offset:{src*8704+16*i}")
        for i in range(2): r(f"ds_read_b128 {v(pk+4*i,4)}, {v(t2)} offset:{16*i}")
        for i in range(4): r(f"v_lshlrev_b32 {v(tmp+2*i)}, 16, {v(x1v+4*P+i)}\nv_and_b32 {v(tmp+2*i+1)}, 0xffff0000, {v(x1v+4*P+i)}")
        for src in range(4):
            for i in range(0,8,2): r(f"v_pk_add_f32 {v(tmp+i,2)}, {v(tmp+i,2)}, {v(e+8*src+i,2)}")
        for i in range(8): r(f"v_mul_f32 {v(e+i)}, {fb(-math.log2(math.e))}, {v(tmp+i)}")
        for i in range(8): r(f"v_exp_f32 {v(e+i)}, {v(e+i)}")
        for i in range(0,8,2): r(f"v_pk_mul_f32 {v(tmp+i,2)}, {v(tmp+i,2)}, {v(pk+i,2)}")
        for i in range(0,8,2): r(f"v_pk_add_f32 {v(e+i,2)}, {v(e+i,2)}, 1.0 op_sel_hi:[1,0]")
        for i in range(8): r(f"v_rcp_f32 {v(e+i)}, {v(e+i)}")
        for i in range(4): r(f"v_lshlrev_b32 {v(e+8+2*i)}, 16, {v(xv+4*P+i)}\nv_and_b32 {v(e+8+2*i+1)}, 0xffff0000, {v(xv+4*P+i)}")
        for i in range(0,8,2): r(f"v_pk_fma_f32 {v(tmp+i,2)}, {v(tmp+i,2)}, {v(e+i,2)}, {v(e+8+i,2)}")
        for i in range(4): r(f"v_cvt_pk_bf16_f32 {v(e+16+i)}, {v(tmp+2*i)}, {v(tmp+2*i+1)}")
        r(f"s_add_u32 s{sSO2}, s{sOO}, {P*32768}\nbuffer_store_dwordx4 {v(e+16,4)}, {v(vOA)}, {srd(sOUT)}, s{sSO2} offen")
        return r
    poll(f"s_lshl_b32 s{sT}, s{sC}, 7\ns_add_u32 s{sT}, s{sT}, 64")
    A(ldH(0))
    for g in g4(0): A(g)
    poll(f"s_lshl_b32 s{sT}, s{sC}, 7\ns_add_u32 s{sT}, s{sT}, 96")
    A(ldH(1))
    A(wrP(0)); A(epi4(0))
    for g in g4(1): A(g)
    stamp('g4')
    A(wrP(1)); A(epi4(1))
    if stamps:
        A("s_waitcnt vmcnt(0)");
        A(f"s_memrealtime s[{sT+1}:{sT+2}]\ns_waitcnt lgkmcnt(0)\ns_lshl_b32 s{sT}, s{sT+14}, 7\ns_add_u32 s{sT}, s{sT}, {DBGB}")
        gen.names.append('end')
        for i in range(nst[0]+1):
            A(f"v_mov_b32 {v(t)}, s{64+2*i if i<nst[0] else sT+1}\nbuffer_store_dword {v(t)}, {v(vSigA)}, {srd(sWS)}, s{sT} offen offset:{4*i}")
    A("Lend:\ns_endpgm")
    body=A.finish()
    gen.info=dict(nins=A.nins,nops=A.nops,peak=V.peak)
    hdr=open('recurrent_scan__spectral_fnet__mixer_s_mlp__prompt.s.ref').read().split('; Override launch')[0].rstrip() if opt.get('hdr',1) else ''
    return file_text([(KNAME,256,256,LDSN,body,512,256)],hdr)
if __name__=='__main__':
    out=sys.argv[1] if len(sys.argv)>1 else 'k.s'
    import json
    o=[json.loads(x) for x in sys.argv[2:] if x.startswith('{')]
    open(out,'w').write(gen(stamps='-s' in sys.argv,opt=o[0] if o else None)); print(gen.info)
```
